```python
import torch

def _softmax(x, axis=-1):
    return torch.softmax(x, dim=axis)
def _gelu(x):
    return torch.nn.functional.gelu(x, approximate="tanh")
def _silu(x):
    return torch.nn.functional.silu(x)
def _sigmoid(x):
    return torch.sigmoid(x)
def _layernorm(x, axis=-1, eps=1e-5):
    m = x.mean(dim=axis, keepdim=True)
    v = x.var(dim=axis, keepdim=True, unbiased=False)
    return (x - m) / torch.sqrt(v + eps)
def _scatter_add(tgt, idx, src, axis=0):
    return tgt.clone().index_add_(axis, idx, src)
def _segment_sum(src, seg, n):
    out = torch.zeros((n,) + src.shape[1:], dtype=src.dtype)
    return out.index_add_(0, seg, src)
def _pad(x, pw):
    flat = tuple(v for pair in reversed(pw) for v in pair)
    return torch.nn.functional.pad(x, flat)

kernel_name = 'recurrent_scan__gqa_block_cached__glu_gated_swiglu__decode'

def setup_inputs():

    _w = (lambda a: (lambda t: t.to(torch.bfloat16) if t.is_floating_point() else t)(torch.as_tensor(a)))
    def _A_setup():
        B, Sq, D = 4, 1, 512
        Hq, Hkv, Sk, Dh = 32, 8, 4096, 128
        assert Hq % Hkv == 0, (Hq, Hkv)
        return {
            "x": _w((lambda *s: torch.randn(*s, dtype=torch.bfloat16) * 0.05)(B, Sq, D)),
            "k_cache": _w((lambda *s: torch.randn(*s, dtype=torch.bfloat16) * 3.2)(B, Hkv, Sk, Dh)),
            "v_cache": _w((lambda *s: torch.randn(*s, dtype=torch.bfloat16) * 3.2)(B, Hkv, Sk, Dh)),
            "wq": _w((lambda *s: torch.randn(*s, dtype=torch.bfloat16) * 3.2)(D, Hq * Dh) * (D ** -0.5)),
            "wo": _w((lambda *s: torch.randn(*s, dtype=torch.bfloat16) * 3.2)(Hq * Dh, D) * ((Hq * Dh) ** -0.5)),
        }
    _A_in = _A_setup()

    def _B_setup():
        B, S, D, F = 4, 1, 512, 1792
        return {
            "x": _w((lambda *s: torch.randn(*s, dtype=torch.bfloat16) * 0.05)(B, S, D)),
            "w1": _w((lambda *s: torch.randn(*s, dtype=torch.bfloat16) * 0.4)(D, F) * (2.0 / D) ** 0.5),
            "w3": _w((lambda *s: torch.randn(*s, dtype=torch.bfloat16) * 0.4)(D, F) * (2.0 / D) ** 0.5),
            "w2": _w((lambda *s: torch.randn(*s, dtype=torch.bfloat16) * 0.4)(F, D) * (2.0 / F) ** 0.5),
        }
    _B_in = _B_setup()

    return {
        "A_x": _A_in["x"],
        "A_k_cache": _A_in["k_cache"],
        "A_v_cache": _A_in["v_cache"],
        "A_wq": _A_in["wq"],
        "A_wo": _A_in["wo"],
        "B_x": _B_in["x"],
        "B_w1": _B_in["w1"],
        "B_w3": _B_in["w3"],
        "B_w2": _B_in["w2"],
    }

def reference(A_x, A_k_cache, A_v_cache, A_wq, A_wo, B_x, B_w1, B_w3, B_w2):
    def _A_ref(x, k_cache, v_cache, wq, wo):
        B, Sq, D = x.shape
        Hq, Dh = 32, 128
        Hkv = k_cache.shape[1]
        rep = Hq // Hkv
        q = (lambda x, *d: x.permute(*d))((x @ wq).reshape(B, Sq, Hq, Dh), 0, 2, 1, 3)
        k = (lambda x, n, axis: torch.repeat_interleave(x, n, dim=axis))(k_cache, rep, axis=1)
        v = (lambda x, n, axis: torch.repeat_interleave(x, n, dim=axis))(v_cache, rep, axis=1)
        scores = torch.einsum("bhqd,bhkd->bhqk", q, k) * (Dh ** -0.5)
        p = _softmax(scores, axis=-1)
        o = torch.einsum("bhqk,bhkd->bhqd", p, v)
        return (lambda x, *d: x.permute(*d))(o, 0, 2, 1, 3).reshape(B, Sq, Hq * Dh) @ wo

    def _B_ref(x, w1, w3, w2):
        gate = torch.einsum("bsd,df->bsf", x, w1)
        up = torch.einsum("bsd,df->bsf", x, w3)
        h = _silu(gate) * up
        out = torch.einsum("bsf,fd->bsd", h, w2)
        return out

    x = A_x
    xn = _layernorm(x, axis=-1)
    s = _A_ref(xn, A_k_cache, A_v_cache, A_wq, A_wo)
    g = _silu(_B_ref(xn, B_w1, B_w3, B_w2))
    return x + s * g
```

```python
class Asm:
    def __init__(self):
        self.lines = []
        self._lab = 0
    def __call__(self, s=""):
        for l in s.split("\n"):
            self.lines.append("    " + l.strip() if l.strip() and not l.strip().endswith(":") else l.strip())
    def label(self, name):
        self.lines.append(name + ":")
    def newlabel(self, base="L"):
        self._lab += 1
        return f"{base}_{self._lab}"
    def text(self):
        return "\n".join(self.lines) + "\n"

def header(name, grid, block, lds, comment=""):
    return f"""; {comment}
; @launch grid=({grid},1,1) block=({block},1,1) lds={lds}
.amdgcn_target "amdgcn-amd-amdhsa--gfx950"
.text
.globl {name}
.p2align 8
.type {name},@function
{name}:
"""

def footer(name, vgpr, sgpr=102, kernarg=96):
    acc = (vgpr + 3) // 4 * 4
    return f""".section .rodata,"a"
.p2align 6
.amdhsa_kernel {name}
  .amdhsa_next_free_vgpr {vgpr}
  .amdhsa_next_free_sgpr {sgpr}
  .amdhsa_accum_offset {acc}
  .amdhsa_group_segment_fixed_size 0
  .amdhsa_kernarg_size {kernarg}
  .amdhsa_user_sgpr_count 2
  .amdhsa_user_sgpr_kernarg_segment_ptr 1
  .amdhsa_system_sgpr_workgroup_id_x 1
.end_amdhsa_kernel
"""
```

```python
import re

TRANS = ("v_exp_f32", "v_log_f32", "v_rcp_f32", "v_rsq_f32", "v_sqrt_f32", "v_sin_f32", "v_cos_f32")

def regs_of(tok):
    tok = tok.strip().lstrip('-').strip('|')
    m = re.fullmatch(r"([vsa])\[(\d+):(\d+)\]", tok)
    if m:
        return m.group(1), set(range(int(m.group(2)), int(m.group(3)) + 1))
    m = re.fullmatch(r"([vsa])(\d+)", tok)
    if m:
        return m.group(1), {int(m.group(2))}
    if tok in ("vcc", "vcc_lo", "vcc_hi"):
        return "s", {"vcc"}
    if tok in ("exec", "exec_lo", "exec_hi"):
        return "s", {"exec"}
    if tok == "m0":
        return "s", {"m0"}
    return None, set()

class Ins:
    def __init__(self, text):
        self.text = text
        t = text.split(";")[0].strip()
        self.is_label = t.endswith(":")
        self.label = t[:-1] if self.is_label else None
        self.empty = (t == "") or t.startswith(".")
        self.op = None
        self.vr = set(); self.vw = set(); self.sr = set(); self.sw = set()
        self.kind = None
        self.dpp = False; self.trans = False
        self.mf = None
        self.nop = 1
        self.target = None
        self.store_data = set()
        self.lds_dma = False
        self.lanesel = set()
        if self.is_label or self.empty:
            return
        parts = t.split(None, 1)
        op = parts[0]; self.op = op
        rest = parts[1] if len(parts) > 1 else ""
        mm = re.search(r"\s(quad_perm|row_\w+|bank_mask|bound_ctrl|offset\d?:|offen|idxen|sc0|sc1|nt|lds|glc|bitop3|op_sel|neg_lo|neg_hi|clamp|mul:|div:|off\b(?!,))", " " + rest)
        if mm and not rest.strip().startswith("off"):
            cut = mm.start()
            opstr = (" " + rest)[:cut]; mods = (" " + rest)[cut:]
        else:
            opstr = rest; mods = ""
        ops = [x.strip() for x in opstr.split(",") if x.strip()]
        self.ops = ops; self.mods = mods
        R = [regs_of(o) for o in ops]
        def addr(idx):
            if idx < len(R):
                k, s = R[idx]
                if k == "v": self.vr |= s
                elif k == "s": self.sr |= s
        def addw(idx):
            if idx < len(R):
                k, s = R[idx]
                if k == "v": self.vw |= s
                elif k == "s": self.sw |= s
        if op == "s_nop":
            self.kind = "nop"; self.nop = int(ops[0], 0) + 1
        elif op.startswith("s_cbranch") or op == "s_branch":
            self.kind = "branch"; self.target = ops[0]
        elif op == "s_endpgm":
            self.kind = "end"
        elif op.startswith("v_mfma"):
            self.kind = "mfma"
            self.mf = dict(d=R[0][1], a=R[1][1] if R[1][0] == "v" else set(), b=R[2][1] if R[2][0] == "v" else set(),
                           c=R[3][1] if R[3][0] == "v" else set())
            self.vw = set(R[0][1]); self.vr = self.mf["a"] | self.mf["b"] | self.mf["c"]
        elif op.startswith("v_"):
            self.kind = "valu"
            self.dpp = ("quad_perm" in mods) or ("row_" in mods) or op.endswith("_dpp")
            self.trans = any(op.startswith(x) for x in TRANS)
            if op.startswith("v_permlane"):
                self.kind = "permlane"
                addw(0); addw(1); addr(0); addr(1)
            elif op.startswith("v_readfirstlane") or op.startswith("v_readlane"):
                self.kind = "readlane"
                addw(0); addr(1)
                if len(R) > 2 and R[2][0] == "s":
                    self.sr |= R[2][1]; self.lanesel = set(R[2][1])
            elif op.startswith("v_writelane"):
                addw(0); addr(0); addr(1)
                if len(R) > 2 and R[2][0] == "s":
                    self.sr |= R[2][1]; self.lanesel = set(R[2][1])
            elif op.startswith("v_cmp"):
                addw(0)
                for i in range(1, len(R)): addr(i)
            else:
                addw(0)
                for i in range(1, len(R)): addr(i)
                if op.startswith("v_cndmask") and len(ops) == 3:
                    self.sr.add("vcc")
                if op.startswith(("v_fmac", "v_mac", "v_dot2c")) or self.dpp:
                    addr(0)
                if op.startswith(("v_add_co", "v_sub_co", "v_addc_co", "v_subb_co")):
                    addw(1)
        elif op.startswith(("buffer_", "global_")):
            self.kind = "vmem"
            is_lds = bool(re.search(r"\blds\b", mods)) or "load_lds" in op
            self.lds_dma = is_lds
            if "load" in op and not is_lds:
                addw(0)
                for i in range(1, len(R)): addr(i)
            elif is_lds:
                for i in range(0, len(R)): addr(i)
                self.sr.add("m0")
            else:
                for i in range(0, len(R)): addr(i)
                if op.startswith("buffer_"):
                    data = R[0][1]
                else:
                    data = R[1][1]
                if "x4" in op or "x3" in op:
                    self.store_data = set(data)
        elif op.startswith("ds_"):
            self.kind = "ds"
            if op.startswith(("ds_read", "ds_add_rtn", "ds_swizzle", "ds_bpermute", "ds_permute", "ds_max_rtn")):
                addw(0)
                for i in range(1, len(R)): addr(i)
            else:
                for i in range(0, len(R)): addr(i)
        elif op.startswith("s_"):
            self.kind = "salu"
            if op.startswith(("s_cmp", "s_waitcnt", "s_barrier", "s_sleep", "s_setprio", "s_bitcmp")):
                for i in range(0, len(R)): addr(i)
            else:
                addw(0)
                for i in range(1, len(R)): addr(i)
                if "saveexec" in op:
                    self.sw.add("exec")
        else:
            raise ValueError("unparsed: " + text)

def need(prod, cons):
    n = 0
    pv = prod.kind in ("valu", "permlane", "readlane")
    cv = cons.kind in ("valu", "permlane", "readlane")
    if pv:
        w = prod.vw
        if w:
            if cons.dpp and (w & cons.vr): n = max(n, 2)
            if cons.kind == "permlane" and (w & cons.vr): n = max(n, 2)
            if cons.kind == "readlane" and (w & cons.vr): n = max(n, 1)
            if cons.kind == "mfma" and (w & cons.vr): n = max(n, 2)
            if prod.trans and (cv or cons.kind == "mfma") and (w & cons.vr): n = max(n, 1)
        sw = prod.sw
        if sw:
            if cons.kind == "vmem" and (sw & cons.sr): n = max(n, 5)
            if cv and (sw & cons.sr): n = max(n, 2)
            if cons.lanesel & sw: n = max(n, 4)
            if "exec" in sw:
                if cons.dpp: n = max(n, 5)
                if cons.kind == "mfma": n = max(n, 4)
                if cons.kind in ("permlane", "readlane"): n = max(n, 4)
    if prod.kind == "mfma":
        d = prod.mf["d"]
        if cons.kind == "mfma":
            if d & (cons.mf["a"] | cons.mf["b"]): n = max(n, 8)
            if d & cons.mf["c"] and cons.mf["c"] != d: n = max(n, 6)
            if d & cons.mf["d"] and not (d & cons.mf["c"]): n = max(n, 8)
        elif cons.kind in ("valu", "permlane", "readlane", "vmem", "ds"):
            if d & (cons.vr | cons.vw): n = max(n, 8)
        if cv and (prod.mf["c"] & cons.vw): n = max(n, 3)
    if prod.kind == "vmem" and prod.store_data:
        if cv and (prod.store_data & cons.vw): n = max(n, 2)
        elif (prod.store_data & cons.vw): n = max(n, 1)
    if prod.kind == "salu" and "m0" in prod.sw and cons.lds_dma: n = max(n, 1)
    return n

def fix(lines, verbose=False):
    ins = [Ins(l) for l in lines]
    real = [i for i, x in enumerate(ins)]
    labels = {x.label: i for i, x in enumerate(ins) if x.is_label}
    jumps = {}
    for i, x in enumerate(ins):
        if x.kind == "branch":
            if x.target not in labels:
                raise ValueError("unknown label " + x.target)
            jumps.setdefault(labels[x.target], []).append(i)
    pad = [0] * len(ins)
    def required(i):
        cons = ins[i]
        best = 0
        stack = [(i, 0)]
        seen = {}
        while stack:
            p, ws = stack.pop()
            preds = []
            if p in jumps and ins[p].is_label:
                preds += [(j, True) for j in jumps[p]]
            if p > 0:
                q = ins[p - 1]
                if not (q.kind == "end" or q.op == "s_branch"):
                    preds.append((p - 1, False))
            for (j, _) in preds:
                x = ins[j]
                w = ws + (pad[p] if p != i else 0) if not _ else ws
                if x.is_label or x.empty:
                    key = (j, w)
                    if key not in seen:
                        seen[key] = 1; stack.append((j, w))
                    continue
                nreq = need(x, cons)
                if nreq > w: best = max(best, nreq - w)
                w2 = w + x.nop
                if w2 < 9:
                    key = (j, w2)
                    if key not in seen:
                        seen[key] = 1; stack.append((j, w2))
        return best
    for i, x in enumerate(ins):
        if x.is_label or x.empty or x.kind == "nop":
            continue
        r = required(i)
        if r > 0:
            pad[i] = r
    out = []
    total = 0
    for i, x in enumerate(ins):
        if pad[i]:
            n = pad[i]; total += n
            while n > 0:
                k = min(n, 8)
                out.append(f"    s_nop {k-1}")
                n -= k
        out.append(x.text)
    if verbose:
        print("hazard pads inserted:", total)
    return out
```

```python
import sys
from asmlib import Asm
import hazard

NAME = "recurrent_scan__gqa_block_cached__glu_gated_swiglu__decode_kernel"

Q_OFF, H_OFF, Z_OFF, O_OFF, ML_OFF, Y_OFF, DBG_OFF = 0x1000, 0x20000, 0x30000, 0x100000, 0x180000, 0x200000, 0x400000
WS_SIZE = 0x800000
WQT, W1T, W3T, W2T, WOT = 0, 16384, 24576, 32768, 40960
XN, XNS = 57344, 1088
QL, MT, LT, CNT, AL, ALS, RED = 61696, 62720, 62848, 62976, 63040, 144, 65536
LDS_SIZE = 81920
C_XN, C_Q, C_M, C_RED, C_QST, C_HST, C_ZST = [CNT + 4 * i for i in range(7)]
LOG2E = "0x3fb8aa3b"
SCALE = "0x3db504f3"

sWG, sWV = 2, 3
sX, sK, sV, sWQ, sWO, sW1, sW3, sW2, sOUT, sDBG, sWS = 4, 6, 8, 10, 12, 16, 18, 20, 22, 24, 26
sKVH, sJ, sT, sT12 = 28, 29, 30, 31
WSR = "s[32:35]"
RA, RB, RC = 36, 40, 44
sT16 = 48
sTMP = 50
sSPIN = 64
sHB = 65
sSTAMP = 70

HEAD = """; Kernarg layout for this problem (96 bytes, ptrs only, base s[0:1]):
"""

def srd(a, base, ptr, size, off=None):
    if off is None:
        a(f"s_mov_b32 s{base}, s{ptr}\ns_mov_b32 s{base+1}, s{ptr+1}")
    else:
        a(f"s_add_u32 s{base}, s{ptr}, s{off}\ns_addc_u32 s{base+1}, s{ptr+1}, 0")
    a(f"s_mov_b32 s{base+2}, {size}\ns_mov_b32 s{base+3}, 0x00020000")

def R(b): return f"s[{b}:{b+3}]"
def vr(b, n): return f"v[{b}:{b+n-1}]"

DPPF = "row_mask:0xf bank_mask:0xf"

class G:
    def __init__(self, prof=False, kv_nt=True, w_nt=False, spin_lds=1 << 18, spin_glb=1 << 14):
        self.a = Asm()
        self.prof = prof
        self.kv_nt = " nt" if kv_nt else ""
        self.w_nt = " nt" if w_nt else ""
        self.spin_lds = spin_lds
        self.spin_glb = spin_glb
        self.nstamp = 0

    def stamp(self, i):
        if self.prof:
            self.a(f"s_memrealtime s[{sSTAMP+2*i}:{sSTAMP+2*i+1}]")

    def dump_stamps(self, n, vt=4):
        if not self.prof: return
        a = self.a
        a("s_waitcnt lgkmcnt(0)")
        a(f"v_mov_b32 v{vt}, 0")
        for i in range(n):
            a(f"v_writelane_b32 v{vt}, s{sSTAMP+2*i}, {i}")
        a(f"""s_mul_i32 s{sTMP}, s{sWG}, 12
        s_add_u32 s{sTMP}, s{sTMP}, s{sWV}
        s_lshl_b32 s{sTMP}, s{sTMP}, 6
        s_add_u32 s{sTMP}, s{sTMP}, {DBG_OFF}
        v_mbcnt_lo_u32_b32 v{vt+1}, -1, 0
        v_mbcnt_hi_u32_b32 v{vt+1}, -1, v{vt+1}
        v_lshlrev_b32 v{vt+1}, 2, v{vt+1}
        v_add_u32 v{vt+1}, s{sTMP}, v{vt+1}
        s_mov_b64 exec, 0xffff
        buffer_store_dword v{vt}, v{vt+1}, {WSR}, 0 offen
        s_mov_b64 exec, -1""")

    def rows_allreduce(self, op, x, t):
        a = self.a
        a(f"""v_mov_b32 v{t}, v{x}
        v_permlane32_swap_b32 v{x}, v{t}
        {op} v{x}, v{x}, v{t}
        v_mov_b32 v{t}, v{x}
        v_permlane16_swap_b32 v{x}, v{t}
        {op} v{x}, v{x}, v{t}""")

    def quad_allreduce(self, op, x):
        a = self.a
        a(f"{op}_dpp v{x}, v{x}, v{x} quad_perm:[1,0,3,2] {DPPF}")
        a(f"{op}_dpp v{x}, v{x}, v{x} quad_perm:[2,3,0,1] {DPPF}")

    def wave_allreduce_add(self, x, t):
        a = self.a
        self.quad_allreduce("v_add_f32", x)
        a(f"v_add_f32_dpp v{x}, v{x}, v{x} row_half_mirror {DPPF}")
        a(f"v_add_f32_dpp v{x}, v{x}, v{x} row_mirror {DPPF}")
        self.rows_allreduce("v_add_f32", x, t)

    def lds_signal(self, cnt, vzero, vone):
        self.a(f"""s_mov_b64 exec, 1
        ds_add_u32 v{vzero}, v{vone} offset:{cnt}
        s_mov_b64 exec, -1""")

    def lds_wait(self, cnt, val, vzero, vt, sleep=1, extra=None, stage=0):
        a = self.a
        L = a.newlabel("L_spin"); D = a.newlabel("L_spun")
        a(f"s_mov_b32 s{sSPIN}, {self.spin_lds}")
        a.label(L)
        a(f"ds_read_b32 v{vt}, v{vzero} offset:{cnt}")
        if extra: a(extra)
        a(f"""s_waitcnt lgkmcnt(0)
        v_cmp_le_u32 vcc, {val}, v{vt}
        s_cbranch_vccnz {D}""")
        if sleep: a(f"s_sleep {sleep}")
        a(f"""s_sub_u32 s{sSPIN}, s{sSPIN}, 1
        s_cmp_lg_u32 s{sSPIN}, 0
        s_cbranch_scc1 {L}""")
        a.label(D)

    def glb_poll(self, loads, regs, tagv, maskbits, vt, sleep=0):
        a = self.a
        L = a.newlabel("L_poll"); D = a.newlabel("L_polled")
        a(f"s_mov_b32 s{sSPIN}, {self.spin_glb}")
        a.label(L)
        a(loads)
        a("s_waitcnt vmcnt(0)")
        for r in regs:
            a(f"v_xor_b32 v{r}, s{tagv}, v{r}")
        rs = list(regs)
        a(f"v_or3_b32 v{vt}, v{rs[0]}, v{rs[1]}, v{rs[2]}")
        i = 3
        while i + 1 < len(rs):
            a(f"v_or3_b32 v{vt}, v{vt}, v{rs[i]}, v{rs[i+1]}"); i += 2
        if i < len(rs):
            a(f"v_or_b32 v{vt}, v{vt}, v{rs[i]}")
        a(f"""v_and_b32 v{vt}, {hex(maskbits)}, v{vt}
        v_cmp_ne_u32 vcc, 0, v{vt}
        s_cbranch_vccz {D}""")
        if sleep: a(f"s_sleep {sleep}")
        a(f"""s_sub_u32 s{sSPIN}, s{sSPIN}, 1
        s_cmp_lg_u32 s{sSPIN}, 0
        s_cbranch_scc1 {L}""")
        a.label(D)

    def tag_f32(self, regs, vtag, smask):
        a = self.a
        for r in regs:
            a(f"v_add_u32 v{r}, 0x800, v{r}")
        for r in regs:
            a(f"v_bfi_b32 v{r}, s{smask}, v{vtag}, v{r}")

    def reduce_scatter_rows(self, r0):
        a = self.a
        a(f"""v_permlane32_swap_b32 v{r0}, v{r0+1}
        v_permlane32_swap_b32 v{r0+2}, v{r0+3}
        v_add_f32 v{r0}, v{r0}, v{r0+1}
        v_add_f32 v{r0+2}, v{r0+2}, v{r0+3}
        v_permlane16_swap_b32 v{r0}, v{r0+2}
        v_add_f32 v{r0}, v{r0}, v{r0+2}""")

    def silu(self, x, t):
        a = self.a
        a(f"""v_mul_f32 v{t}, 0xbfb8aa3b, v{x}
        v_exp_f32 v{t}, v{t}
        v_add_f32 v{t}, 1.0, v{t}
        v_rcp_f32 v{t}, v{t}
        v_mul_f32 v{x}, v{x}, v{t}""")

    def bf16r(self, x, y, t):
        a = self.a
        a(f"""v_cvt_pk_bf16_f32 v{t}, v{x}, v{y}
        v_lshlrev_b32 v{x}, 16, v{t}
        v_and_b32 v{y}, 0xffff0000, v{t}""")

    def prologue(self):
        a = self.a
        a(f"""s_cmp_ge_u32 s{sWG}, 256
        s_cbranch_scc1 L_end
        s_load_dwordx16 s[4:19], s[0:1], 0
        s_load_dwordx8 s[20:27], s[0:1], 64
        v_lshrrev_b32 v1, 6, v0
        v_and_b32 v0, 63, v0
        v_readfirstlane_b32 s{sWV}, v1
        s_and_b32 s{sKVH}, s{sWG}, 7
        s_lshr_b32 s{sJ}, s{sWG}, 3""")
        self.stamp(0)
        a(f"""s_cmp_ge_u32 s{sWV}, 8
        s_cbranch_scc1 L_helper""")

    def tags(self):
        a = self.a
        a(f"""s_add_u32 s{sT}, s{sT}, 1
        s_and_b32 s{sT12}, s{sT}, 0xfff
        s_and_b32 s{sT16}, s{sT}, 0xffff""")

    def swave(self):
        a = self.a
        vKO, vVO, vM0, vM1, vZ, vONE, vT, vT2 = 1, 2, 3, 4, 5, 6, 7, 144
        KB, VB, QB, XB, ACC = 8, 72, 136, 140, 152
        vM, vL, vAD = 145, 146, 147
        sO1, sO2, sO3 = 52, 53, 54
        sM1, sM2, sM3 = 56, 58, 60
        a(f"""v_and_b32 v{vT}, 15, v0
        v_lshrrev_b32 v{vT}, 2, v{vT}
        v_lshlrev_b32 v{vKO}, 8, v{vT}
        v_lshrrev_b32 v{vT}, 4, v0
        v_lshl_add_u32 v{vKO}, v{vT}, 6, v{vKO}
        v_and_b32 v{vT}, 3, v0
        v_lshl_add_u32 v{vKO}, v{vT}, 4, v{vKO}
        v_lshlrev_b32 v{vVO}, 4, v0
        v_mov_b32 v{vZ}, 0
        v_mov_b32 v{vONE}, 1
        s_lshr_b32 s{sTMP}, s{sJ}, 3
        s_lshl_b32 s{sTMP}, s{sTMP}, 3
        s_add_u32 s{sTMP}, s{sTMP}, s{sKVH}
        s_lshl_b32 s{sTMP}, s{sTMP}, 20
        s_and_b32 s{sTMP+1}, s{sJ}, 7
        s_lshl_b32 s{sTMP+1}, s{sTMP+1}, 17
        s_add_u32 s{sTMP}, s{sTMP}, s{sTMP+1}
        s_lshl_b32 s{sTMP+1}, s{sWV}, 14
        s_add_u32 s{sTMP}, s{sTMP}, s{sTMP+1}
        s_mov_b32 s{sO1}, 4096
        s_mov_b32 s{sO2}, 8192
        s_mov_b32 s{sO3}, 12288""")
        a(f"""s_cmp_lg_u32 s{sWV}, 0
        s_cbranch_scc1 L_noclr
        v_lshlrev_b32 v{vT}, 2, v0
        s_mov_b64 exec, 0xffff
        ds_write_b32 v{vT}, v{vZ} offset:{CNT}
        s_mov_b64 exec, -1""")
        a.label("L_noclr")
        a("s_waitcnt lgkmcnt(0)")
        srd(a, RA, sK, 16384, sTMP)
        srd(a, RB, sV, 16384, sTMP)
        srd(a, 32, sWS, WS_SIZE)
        a(f"s_load_dword s{sT}, s[{sWS}:{sWS+1}], 0")
        a("s_barrier")
        a("s_setprio 1")
        so = ["0", f"s{sO1}", f"s{sO2}", f"s{sO3}"]
        for i in range(16):
            a(f"buffer_load_dwordx4 {vr(KB+4*i,4)}, v{vKO}, {R(RA)}, {so[i//4]} offen offset:{(i%4)*1024}{self.kv_nt}")
        a("s_setprio 0")
        for i in range(8):
            a(f"buffer_load_dwordx4 {vr(VB+4*i,4)}, v{vVO}, {R(RB)}, {so[i//4]} offen offset:{(i%4)*1024}{self.kv_nt}")
        self.stamp(1)
        a(f"""v_and_b32 v{vT}, 3, v0
        v_mov_b32 v{vT2}, 0xffff
        s_mov_b32 s{sM1}, 0x22222222
        s_mov_b32 s{sM1+1}, 0x22222222
        s_mov_b32 s{sM2}, 0x44444444
        s_mov_b32 s{sM2+1}, 0x44444444
        s_mov_b32 s{sM3}, 0x88888888
        s_mov_b32 s{sM3+1}, 0x88888888
        v_cmp_eq_u32 vcc, 0, v{vT}
        v_mov_b32 v{vM1}, 0xffff0000
        v_cndmask_b32 v{vM0}, 0, v{vT2}, vcc
        v_cndmask_b32 v{vM0}, v{vM0}, v{vM1}, s[{sM1}:{sM1+1}]
        v_cndmask_b32 v{vT}, 0, v{vT2}, s[{sM2}:{sM2+1}]
        v_cndmask_b32 v{vM1}, v{vT}, v{vM1}, s[{sM3}:{sM3+1}]""")
        a(f"""v_lshrrev_b32 v{vT}, 2, v0
        v_and_b32 v{vT}, 3, v{vT}
        v_lshlrev_b32 v{vAD}, 8, v{vT}
        v_lshlrev_b32 v{vT2}, 5, v{vT}
        v_lshrrev_b32 v{vT}, 4, v0
        v_lshl_add_u32 v{vAD}, v{vT}, 6, v{vAD}
        v_and_b32 v{vT}, 3, v0
        v_lshl_add_u32 v{vAD}, v{vT}, 4, v{vAD}""")
        a("s_waitcnt lgkmcnt(0)")
        self.tags()
        a("s_waitcnt vmcnt(8)")
        self.stamp(2)
        self.lds_wait(C_Q, 1, vZ, vT, sleep=1, extra=f"ds_read_b128 {vr(QB,4)}, v{vAD} offset:{QL}")
        self.stamp(3)
        for i in range(16):
            k = KB + 4 * i
            a(f"v_mfma_f32_16x16x32_bf16 {vr(k,4)}, {vr(k,4)}, {vr(QB,4)}, 0")
        for u in range(4):
            for t in range(4):
                k = KB + 4 * (4 * u + t)
                a(f"v_add_f32_dpp v{k+t}, v{k+(t^1)}, v{k+t} quad_perm:[1,0,3,2] {DPPF}")
                a(f"v_add_f32_dpp v{k+(t^2)}, v{k+(t^3)}, v{k+(t^2)} quad_perm:[1,0,3,2] {DPPF}")
            for t in range(4):
                k = KB + 4 * (4 * u + t)
                a(f"v_add_f32_dpp v{k+t}, v{k+(t^2)}, v{k+t} quad_perm:[2,3,0,1] {DPPF}")
            k0 = KB + 16 * u
            a(f"v_cndmask_b32 v{XB+u}, v{k0}, v{k0+4+1}, s[{sM1}:{sM1+1}]")
            a(f"v_cndmask_b32 v{XB+u}, v{XB+u}, v{k0+8+2}, s[{sM2}:{sM2+1}]")
            a(f"v_cndmask_b32 v{XB+u}, v{XB+u}, v{k0+12+3}, s[{sM3}:{sM3+1}]")
        self.bf16r(XB, XB + 1, vT); self.bf16r(XB + 2, XB + 3, vM)
        for u in range(4):
            a(f"v_mul_f32 v{XB+u}, {SCALE}, v{XB+u}")
        self.bf16r(XB, XB + 1, vT); self.bf16r(XB + 2, XB + 3, vM)
        a(f"""v_max3_f32 v{vM}, v{XB}, v{XB+1}, v{XB+2}
        v_max_f32 v{vM}, v{vM}, v{XB+3}""")
        self.quad_allreduce("v_max_f32", vM)
        self.rows_allreduce("v_max_f32", vM, vT)
        a(f"""s_lshl_b32 s{sTMP}, s{sWV}, 2
        v_add_u32 v{vAD}, s{sTMP}, v{vT2}
        ds_write_b32 v{vAD}, v{vM} offset:{MT}""")
        self.lds_signal(C_M, vZ, vONE)
        self.stamp(4)
        for i in range(8, 16):
            a(f"buffer_load_dwordx4 {vr(VB+4*i,4)}, v{vVO}, {R(RB)}, {so[i//4]} offen offset:{(i%4)*1024}{self.kv_nt}")
        self.stamp(5)
        tb = KB + 40
        self.lds_wait(C_M, 8, vZ, vT, sleep=1,
                      extra=f"ds_read_b128 {vr(tb,4)}, v{vT2} offset:{MT}\nds_read_b128 {vr(tb+4,4)}, v{vT2} offset:{MT+16}")
        a(f"""v_max3_f32 v{vM}, v{tb}, v{tb+1}, v{tb+2}
        v_max3_f32 v{vM}, v{vM}, v{tb+3}, v{tb+4}
        v_max3_f32 v{vM}, v{vM}, v{tb+5}, v{tb+6}
        v_max_f32 v{vM}, v{vM}, v{tb+7}""")
        for u in range(4): a(f"v_sub_f32 v{XB+u}, v{XB+u}, v{vM}")
        for u in range(4): a(f"v_mul_f32 v{XB+u}, {LOG2E}, v{XB+u}")
        for u in range(4): a(f"v_exp_f32 v{XB+u}, v{XB+u}")
        a(f"""v_add_f32 v{vL}, v{XB}, v{XB+1}
        v_add_f32 v{vT}, v{XB+2}, v{XB+3}
        v_add_f32 v{vL}, v{vL}, v{vT}""")
        for u in range(4): a(f"v_cvt_pk_bf16_f32 v{XB+u}, v{XB+u}, v{XB+u}")
        self.quad_allreduce("v_add_f32", vL)
        for i in range(16):
            u, t = i // 4, i % 4
            a(f"v_and_b32_dpp v{KB+2*i}, v{XB+u}, v{vM0} quad_perm:[{t},{t},{t},{t}] {DPPF}")
            a(f"v_and_b32_dpp v{KB+2*i+1}, v{XB+u}, v{vM1} quad_perm:[{t},{t},{t},{t}] {DPPF}")
        self.rows_allreduce("v_add_f32", vL, vT)
        a(f"ds_write_b32 v{vAD}, v{vL} offset:{LT}")
        self.stamp(6)
        for i in range(16):
            a(f"s_waitcnt vmcnt({15-i})")
            s = (i & 1) * 8
            for h in range(2):
                d = ACC + s + 4 * h
                c = "0" if i < 2 else vr(d, 4)
                a(f"v_mfma_f32_16x16x16_bf16 {vr(d,4)}, {vr(KB+2*i,2)}, {vr(VB+4*i+2*h,2)}, {c}")
        self.stamp(7)
        a(f"""v_lshlrev_b32 v{vAD}, 4, v0
        s_lshl_b32 s{sTMP}, s{sWV}, 11
        s_add_u32 s{sTMP}, s{sTMP}, {RED}
        v_add_u32 v{vT}, s{sTMP}, v{vAD}""")
        for r in range(8):
            a(f"v_add_f32 v{ACC+r}, v{ACC+r}, v{ACC+8+r}")
        a(f"""ds_write_b128 v{vT}, {vr(ACC,4)}
        ds_write_b128 v{vT}, {vr(ACC+4,4)} offset:1024
        s_mov_b64 exec, 1
        ds_add_rtn_u32 v{vT}, v{vZ}, v{vONE} offset:{C_RED}
        s_mov_b64 exec, -1
        s_waitcnt lgkmcnt(0)
        v_readfirstlane_b32 s{sTMP}, v{vT}
        s_cmp_lg_u32 s{sTMP}, 7
        s_cbranch_scc1 L_sdone""")
        a(f"v_add_u32 v{vAD}, {RED}, v{vAD}")
        for w in range(8):
            for j in range(2):
                a(f"ds_read_b128 {vr(KB+8*w+4*j,4)}, v{vAD} offset:{w*2048+j*1024}")
        a(f"ds_read_b128 {vr(VB,4)}, v{vT2} offset:{LT}\nds_read_b128 {vr(VB+4,4)}, v{vT2} offset:{LT+16}")
        vOA, vMLA, vTG = 136, 137, 138
        a(f"""s_lshl_b32 s{sTMP}, s{sWG}, 11
        s_add_u32 s{sTMP}, s{sTMP}, {O_OFF}
        v_lshlrev_b32 v{vOA}, 4, v0
        v_add_u32 v{vOA}, s{sTMP}, v{vOA}
        s_lshr_b32 s{sTMP}, s{sJ}, 3
        s_lshl_b32 s{sTMP}, s{sTMP}, 3
        s_add_u32 s{sTMP}, s{sTMP}, s{sKVH}
        s_lshl_b32 s{sTMP}, s{sTMP}, 8
        s_and_b32 s{sTMP+1}, s{sJ}, 3
        s_lshl_b32 s{sTMP+1}, s{sTMP+1}, 4
        s_add_u32 s{sTMP}, s{sTMP}, s{sTMP+1}
        s_bfe_u32 s{sTMP+1}, s{sJ}, 0x10002
        s_lshl_b32 s{sTMP+1}, s{sTMP+1}, 3
        s_add_u32 s{sTMP}, s{sTMP}, s{sTMP+1}
        s_add_u32 s{sTMP}, s{sTMP}, {ML_OFF}
        v_lshl_add_u32 v{vMLA}, v{vT2}, 1, s{sTMP}
        v_mov_b32 v{vTG}, s{sT12}
        s_mov_b32 s{sTMP+2}, 0xfff
        s_waitcnt lgkmcnt(0)""")
        for step in (4, 2, 1):
            for w in range(0, step):
                for r in range(8):
                    a(f"v_add_f32 v{KB+8*w+r}, v{KB+8*w+r}, v{KB+8*(w+step)+r}")
        self.tag_f32(range(KB, KB + 8), vTG, sTMP + 2)
        a(f"buffer_store_dwordx4 {vr(KB,4)}, v{vOA}, {WSR}, 0 offen sc1")
        a(f"buffer_store_dwordx4 {vr(KB+4,4)}, v{vOA}, {WSR}, 0 offen offset:1024 sc1")
        a(f"""v_add_f32 v{VB}, v{VB}, v{VB+1}
        v_add_f32 v{VB+2}, v{VB+2}, v{VB+3}
        v_add_f32 v{VB+4}, v{VB+4}, v{VB+5}
        v_add_f32 v{VB+6}, v{VB+6}, v{VB+7}
        v_add_f32 v{VB}, v{VB}, v{VB+2}
        v_add_f32 v{VB+4}, v{VB+4}, v{VB+6}
        v_add_f32 v{VB+1}, v{VB}, v{VB+4}
        v_or_b32 v{VB}, v{vM}, v{vTG}""")
        self.tag_f32([VB + 1], vTG, sTMP + 2)
        a(f"""s_mov_b64 exec, 0x1111
        buffer_store_dwordx2 {vr(VB,2)}, v{vMLA}, {WSR}, 0 offen sc1
        s_mov_b64 exec, -1""")
        self.stamp(8)
        a.label("L_sdone")
        self.dump_stamps(9)
        a("s_endpgm")

    def dma(self, n, srdb, voff, soff_reg, soff_step, lds_base, lds_step=1024, flags=""):
        a = self.a
        for i in range(n):
            a(f"s_mov_b32 m0, {lds_base + i*lds_step}" if isinstance(lds_base, int) else
              f"s_add_u32 m0, s{lds_base[0]}, {lds_base[1] + i*lds_step}")
            if i > 0:
                a(f"s_add_u32 s{soff_reg}, s{soff_reg}, {soff_step}")
            a(f"buffer_load_dwordx4 v{voff}, {R(srdb)}, s{soff_reg} offen{flags} lds")

    def helper(self):
        a = self.a
        vZ, vONE, vT, vA, vB_, vL4 = 5, 6, 7, 1, 2, 3
        a.label("L_helper")
        a(f"""s_setprio 3
        s_sub_u32 s{sHB}, s{sWV}, 8
        v_mov_b32 v{vZ}, 0
        v_mov_b32 v{vONE}, 1
        v_lshlrev_b32 v{vA}, 4, v0
        s_lshl_b32 s{sTMP}, s{sHB}, 10
        v_add_u32 v{vA}, s{sTMP}, v{vA}
        s_mul_i32 s{sTMP+4}, s{sKVH}, 28
        s_add_u32 s{sTMP+4}, s{sTMP+4}, s{sJ}
        s_waitcnt lgkmcnt(0)""")
        sSL = sTMP + 4
        srd(a, RC, sX, 4096)
        a(f"buffer_load_dwordx4 v[8:11], v{vA}, {R(RC)}, 0 offen")
        srd(a, 32, sWS, WS_SIZE)
        a(f"s_load_dword s{sT}, s[{sWS}:{sWS+1}], 0")
        a(f"""s_cmp_eq_u32 s{sHB}, 0
        s_cbranch_scc1 L_h0a
        s_cmp_eq_u32 s{sHB}, 2
        s_cbranch_scc1 L_h2a
        s_cmp_ge_u32 s{sJ}, 28
        s_cbranch_scc1 L_h2a
        s_cmp_eq_u32 s{sHB}, 1
        s_cbranch_scc1 L_h1a""")
        srd(a, RA, sW2, 1792 * 1024)
        a(f"""v_lshrrev_b32 v{vT}, 4, v0
        v_lshlrev_b32 v{vA}, 10, v{vT}
        v_and_b32 v{vT}, 15, v0
        v_lshl_add_u32 v{vA}, v{vT}, 4, v{vA}
        s_lshr_b32 s{sTMP}, s{sSL}, 2
        s_lshl_b32 s{sTMP}, s{sTMP}, 15
        s_and_b32 s{sTMP+1}, s{sSL}, 3
        s_lshl_b32 s{sTMP+1}, s{sTMP+1}, 8
        s_add_u32 s{sTMP}, s{sTMP}, s{sTMP+1}""")
        self.dma(8, RA, vA, sTMP, 4096, W2T, flags=self.w_nt)
        a("s_barrier\ns_waitcnt vmcnt(8)\ns_branch L_ln")
        a.label("L_h1a")
        srd(a, RA, sW1, 512 * 3584)
        srd(a, RB, sW3, 512 * 3584)
        a(f"""s_movk_i32 s{sTMP+1}, 3584
        v_mul_lo_u32 v{vA}, v0, s{sTMP+1}
        s_lshl_b32 s{sTMP}, s{sSL}, 4""")
        self.dma(8, RA, vA, sTMP, 64 * 3584, W1T, flags=self.w_nt)
        a(f"s_lshl_b32 s{sTMP}, s{sSL}, 4")
        self.dma(8, RB, vA, sTMP, 64 * 3584, W3T, flags=self.w_nt)
        a("s_barrier\ns_waitcnt vmcnt(16)\ns_branch L_ln")
        a.label("L_h0a")
        srd(a, RA, sWQ, 512 * 8192)
        a(f"""v_lshrrev_b32 v{vT}, 1, v0
        v_lshlrev_b32 v{vA}, 13, v{vT}
        v_and_b32 v{vT}, 1, v0
        v_lshl_add_u32 v{vA}, v{vT}, 4, v{vA}
        s_lshl_b32 s{sTMP}, s{sKVH}, 10
        s_lshl_b32 s{sTMP+1}, s{sJ}, 5
        s_add_u32 s{sTMP}, s{sTMP}, s{sTMP+1}""")
        self.dma(16, RA, vA, sTMP, 32 * 8192, WQT, flags=self.w_nt)
        a("s_barrier\ns_waitcnt vmcnt(16)\ns_branch L_ln")
        a.label("L_h2a")
        a("s_barrier\ns_waitcnt vmcnt(0)")
        a.label("L_ln")
        self.stamp(1)
        X = 12
        for i in range(4):
            a(f"v_lshlrev_b32 v{X+2*i}, 16, v{8+i}\nv_and_b32 v{X+2*i+1}, 0xffff0000, v{8+i}")
        S, S2 = 20, 21
        a(f"""v_add_f32 v{S}, v{X}, v{X+1}
        v_add_f32 v{S2}, v{X+2}, v{X+3}
        v_add_f32 v22, v{X+4}, v{X+5}
        v_add_f32 v23, v{X+6}, v{X+7}
        v_add_f32 v{S}, v{S}, v{S2}
        v_add_f32 v22, v22, v23
        v_add_f32 v{S}, v{S}, v22""")
        self.wave_allreduce_add(S, vT)
        a(f"v_mul_f32 v{S}, 0x3b000000, v{S}")
        for i in range(8): a(f"v_sub_f32 v{24+i}, v{X+i}, v{S}")
        a(f"v_mul_f32 v{S2}, v24, v24\nv_mul_f32 v22, v25, v25")
        for i in range(2, 8, 2):
            a(f"v_fmac_f32 v{S2}, v{24+i}, v{24+i}\nv_fmac_f32 v22, v{25+i}, v{25+i}")
        a(f"v_add_f32 v{S2}, v{S2}, v22")
        self.wave_allreduce_add(S2, vT)
        a(f"v_mul_f32 v{S2}, 0x3b000000, v{S2}")
        self.bf16r(S, S2, vT)
        a(f"v_add_f32 v{S2}, 0x3727c5ac, v{S2}")
        a(f"v_cvt_pk_bf16_f32 v{S2}, v{S2}, v{S2}\nv_and_b32 v{S2}, 0xffff0000, v{S2}")
        a(f"v_sqrt_f32 v{S2}, v{S2}")
        a(f"v_cvt_pk_bf16_f32 v{S2}, v{S2}, v{S2}\nv_and_b32 v{S2}, 0xffff0000, v{S2}")
        a(f"v_rcp_f32 v22, v{S2}")
        for i in range(8): a(f"v_sub_f32 v{X+i}, v{X+i}, v{S}")
        for i in range(0, 8, 2): self.bf16r(X + i, X + i + 1, vT)
        for i in range(8): a(f"v_mul_f32 v{24+i}, v{X+i}, v22")
        for i in range(8): a(f"v_fma_f32 v{X+i}, -v{24+i}, v{S2}, v{X+i}")
        for i in range(8): a(f"v_fmac_f32 v{24+i}, v{X+i}, v22")
        for i in range(4): a(f"v_cvt_pk_bf16_f32 v{8+i}, v{24+2*i}, v{25+2*i}")
        a(f"""s_mul_i32 s{sTMP}, s{sHB}, {XNS}
        v_lshlrev_b32 v{vA}, 4, v0
        v_add_u32 v{vA}, s{sTMP}, v{vA}
        ds_write_b128 v{vA}, v[8:11] offset:{XN}""")
        self.lds_signal(C_XN, vZ, vONE)
        a("s_waitcnt lgkmcnt(0)")
        self.tags()
        self.stamp(2)
        vN3, vG, vR = 8, 9, 10
        a(f"""v_and_b32 v{vN3}, 3, v0
        v_lshrrev_b32 v{vG}, 4, v0
        v_lshrrev_b32 v{vR}, 2, v0
        v_and_b32 v{vR}, 3, v{vR}
        v_mov_b32 v11, s{sT16}
        v_mov_b32 v4, s{sT12}
        s_mov_b32 s66, 0xfff
        s_mov_b32 s67, 0xffff0000""")
        vTG16, vTG12, sM12, sMHI = 11, 4, 66, 67
        a(f"""s_cmp_eq_u32 s{sHB}, 2
        s_cbranch_scc1 L_h2b
        s_cmp_eq_u32 s{sHB}, 3
        s_cbranch_scc1 L_h3b
        s_cmp_eq_u32 s{sHB}, 0
        s_cbranch_scc1 L_h0b
        s_cmp_ge_u32 s{sJ}, 28
        s_cbranch_scc1 L_wo""")
        AW, BW, D0 = 16, 80, 144
        vAA, vBA = 12, 13
        def gemv16(rowbytes):
            a("s_waitcnt vmcnt(0)")
            for s in range(16):
                a(f"ds_read_b64_tr_b16 {vr(AW+4*s,2)}, v{vAA} offset:{s*32*rowbytes}")
                a(f"ds_read_b64_tr_b16 {vr(AW+4*s+2,2)}, v{vAA} offset:{s*32*rowbytes+4*rowbytes}")
            a(f"""s_movk_i32 s{sTMP}, {XNS}
            v_mul_lo_u32 v{vBA}, v{vN3}, s{sTMP}
            v_lshl_add_u32 v{vBA}, v{vG}, 4, v{vBA}""")
            self.lds_wait(C_XN, 4, vZ, vT, sleep=0)
            for s in range(16):
                a(f"ds_read_b128 {vr(BW+4*s,4)}, v{vBA} offset:{XN+s*64}")
            for s in range(16):
                if s % 4 == 0: a(f"s_waitcnt lgkmcnt({12-s})")
                d = D0 + 4 * (s & 1)
                c = "0" if s < 2 else vr(d, 4)
                a(f"v_mfma_f32_16x16x32_bf16 {vr(d,4)}, {vr(AW+4*s,4)}, {vr(BW+4*s,4)}, {c}")
            for r in range(4): a(f"v_add_f32 v{D0+r}, v{D0+r}, v{D0+4+r}")
        a(f"""v_lshl_add_u32 v{vT}, v{vG}, 3, v{vR}
        v_lshlrev_b32 v{vAA}, 4, v{vT}
        v_and_b32 v{vT}, 1, v0
        v_lshl_add_u32 v{vAA}, v{vT}, 3, v{vAA}
        v_bfe_u32 v{vT}, v0, 1, 1
        v_lshl_add_u32 v{vAA}, v{vT}, 13, v{vAA}
        v_add_u32 v{vAA}, {W1T}, v{vAA}""")
        gemv16(16)
        self.bf16r(D0, D0 + 1, vT); self.bf16r(D0 + 2, D0 + 3, vT)
        U = D0 + 4
        for r in range(4): a(f"v_mov_b32 v{U+r}, v{D0+r}")
        for r in range(4): a(f"v_permlane32_swap_b32 v{D0+r}, v{U+r}")
        for r in range(4): self.silu(D0 + r, 16 + r)
        self.bf16r(D0, D0 + 1, vT); self.bf16r(D0 + 2, D0 + 3, vT)
        for r in range(4): a(f"v_mul_f32 v{D0+r}, v{D0+r}, v{U+r}")
        a(f"""v_cvt_pk_bf16_f32 v16, v{D0}, v{D0+1}
        v_cvt_pk_bf16_f32 v17, v{D0+2}, v{D0+3}
        v_lshl_or_b32 v20, v16, 16, v{vTG16}
        v_and_or_b32 v21, v16, s{sMHI}, v{vTG16}
        v_lshl_or_b32 v22, v17, 16, v{vTG16}
        v_and_or_b32 v23, v17, s{sMHI}, v{vTG16}
        s_movk_i32 s{sTMP}, 7168
        v_mul_lo_u32 v{vA}, v{vN3}, s{sTMP}
        v_lshl_add_u32 v{vA}, v{vG}, 4, v{vA}
        s_lshl_b32 s{sTMP}, s{sSL}, 5
        s_add_u32 s{sTMP}, s{sTMP}, {H_OFF}
        s_mov_b64 exec, 0x000f000f
        buffer_store_dwordx4 v[20:23], v{vA}, {WSR}, s{sTMP} offen sc1
        s_mov_b64 exec, -1""")
        self.lds_signal(C_HST, vZ, vONE)
        self.stamp(3)
        a("s_branch L_wo")
        a.label("L_h0b")
        a(f"""v_lshl_add_u32 v{vT}, v{vG}, 3, v{vR}
        v_lshlrev_b32 v{vAA}, 5, v{vT}
        v_and_b32 v{vT}, 3, v0
        v_lshl_add_u32 v{vAA}, v{vT}, 3, v{vAA}""")
        assert WQT == 0
        gemv16(32)
        a(f"""v_cvt_pk_bf16_f32 v16, v{D0}, v{D0+1}
        v_cvt_pk_bf16_f32 v17, v{D0+2}, v{D0+3}
        v_lshl_or_b32 v20, v16, 16, v{vTG16}
        v_and_or_b32 v21, v16, s{sMHI}, v{vTG16}
        v_lshl_or_b32 v22, v17, 16, v{vTG16}
        v_and_or_b32 v23, v17, s{sMHI}, v{vTG16}
        v_lshlrev_b32 v{vA}, 14, v{vN3}
        v_lshl_add_u32 v{vA}, v{vG}, 4, v{vA}
        s_lshl_b32 s{sTMP}, s{sKVH}, 11
        s_lshl_b32 s{sTMP+1}, s{sJ}, 6
        s_add_u32 s{sTMP}, s{sTMP}, s{sTMP+1}
        s_add_u32 s{sTMP}, s{sTMP}, {Q_OFF}
        s_mov_b32 exec_lo, 0x000f000f
        s_mov_b32 exec_hi, 0x000f000f
        buffer_store_dwordx4 v[20:23], v{vA}, {WSR}, s{sTMP} offen sc1
        s_mov_b64 exec, -1""")
        self.lds_signal(C_QST, vZ, vONE)
        self.stamp(3)
        a("s_branch L_wo")
        a.label("L_h2b")
        a(f"""v_lshlrev_b32 v{vA}, 5, v0
        s_lshr_b32 s{sTMP}, s{sJ}, 3
        s_lshl_b32 s{sTMP}, s{sTMP}, 14
        s_lshl_b32 s{sTMP+1}, s{sKVH}, 11
        s_add_u32 s{sTMP}, s{sTMP}, s{sTMP+1}
        s_add_u32 s{sTMP}, s{sTMP}, {Q_OFF}""")
        self.lds_wait(C_QST, 1, vZ, vT, sleep=1)
        self.glb_poll(f"buffer_load_dwordx4 v[16:19], v{vA}, {WSR}, s{sTMP} offen sc1\n"
                      f"buffer_load_dwordx4 v[20:23], v{vA}, {WSR}, s{sTMP} offen offset:16 sc1",
                      range(16, 24), sT16, 0xffff, vT)
        a(f"s_mov_b32 s{sTMP}, 0x07060302")
        for i in range(4):
            a(f"v_perm_b32 v{24+i}, v{17+2*i}, v{16+2*i}, s{sTMP}")
        a(f"""v_lshlrev_b32 v{vA}, 4, v0
        ds_write_b128 v{vA}, v[24:27] offset:{QL}""")
        self.lds_signal(C_Q, vZ, vONE)
        self.stamp(3)
        a("s_branch L_wo")
        a.label("L_h3b")
        a(f"""s_cmp_ge_u32 s{sJ}, 28
        s_cbranch_scc1 L_wo
        v_lshl_add_u32 v{vT}, v{vG}, 3, v{vR}
        v_lshlrev_b32 v{vAA}, 8, v{vT}
        v_and_b32 v{vT}, 3, v0
        v_lshl_add_u32 v{vAA}, v{vT}, 3, v{vAA}
        s_waitcnt vmcnt(0)""")
        for blk in range(8):
            a(f"ds_read_b64_tr_b16 {vr(AW+4*blk,2)}, v{vAA} offset:{W2T+blk*32}")
            a(f"ds_read_b64_tr_b16 {vr(AW+4*blk+2,2)}, v{vAA} offset:{W2T+blk*32+4*256}")
        a(f"""s_movk_i32 s{sTMP}, 7168
        v_mul_lo_u32 v{vA}, v{vN3}, s{sTMP}
        v_lshl_add_u32 v{vA}, v{vG}, 5, v{vA}
        s_lshr_b32 s{sTMP}, s{sSL}, 2
        s_lshl_b32 s{sTMP}, s{sTMP}, 7
        s_add_u32 s{sTMP}, s{sTMP}, {H_OFF}""")
        self.lds_wait(C_HST, 1, vZ, vT, sleep=1)
        self.glb_poll(f"buffer_load_dwordx4 v[80:83], v{vA}, {WSR}, s{sTMP} offen sc1\n"
                      f"buffer_load_dwordx4 v[84:87], v{vA}, {WSR}, s{sTMP} offen offset:16 sc1",
                      range(80, 88), sT16, 0xffff, vT)
        a(f"s_mov_b32 s{sTMP}, 0x07060302")
        for i in range(4):
            a(f"v_perm_b32 v{88+i}, v{81+2*i}, v{80+2*i}, s{sTMP}")
        ZD = 96
        for blk in range(8):
            a(f"v_mfma_f32_16x16x32_bf16 {vr(ZD+4*blk,4)}, {vr(AW+4*blk,4)}, v[88:91], 0")
        a(f"""v_lshlrev_b32 v{vA}, 6, v{vN3}
        v_lshl_add_u32 v{vA}, v{vG}, 4, v{vA}
        s_lshl_b32 s{sTMP}, s{sSL}, 11
        s_add_u32 s{sTMP}, s{sTMP}, {Z_OFF}
        s_nop 3""")
        self.tag_f32(range(ZD, ZD + 32), vTG12, sM12)
        a("s_mov_b32 exec_lo, 0x000f000f\ns_mov_b32 exec_hi, 0x000f000f")
        for blk in range(8):
            a(f"buffer_store_dwordx4 {vr(ZD+4*blk,4)}, v{vA}, {WSR}, s{sTMP} offen offset:{blk*256} sc1")
        a("s_mov_b64 exec, -1")
        self.lds_signal(C_ZST, vZ, vONE)
        self.stamp(3)
        a.label("L_wo")
        srd(a, RA, sWO, 4096 * 1024)
        WA = 100
        a(f"""v_lshrrev_b32 v{vT}, 2, v0
        v_lshlrev_b32 v{vA}, 10, v{vT}
        v_and_b32 v{vT}, 3, v0
        v_lshl_add_u32 v{vA}, v{vT}, 4, v{vA}
        s_lshl_b32 s{sTMP}, s{sKVH}, 19
        s_lshr_b32 s{sTMP+1}, s{sJ}, 2
        s_lshl_b32 s{sTMP+1}, s{sTMP+1}, 16
        s_add_u32 s{sTMP}, s{sTMP}, s{sTMP+1}
        s_and_b32 s{sTMP+1}, s{sJ}, 3
        s_lshl_b32 s{sTMP+1}, s{sTMP+1}, 8
        s_add_u32 s{sTMP}, s{sTMP}, s{sTMP+1}
        s_lshl_b32 s{sTMP+1}, s{sHB}, 6
        s_add_u32 s{sTMP}, s{sTMP}, s{sTMP+1}
        s_lshl_b32 s{sTMP+2}, s{sHB}, 12""")
        self.dma(4, RA, vA, sTMP, 16 * 1024, (sTMP + 2, WOT), flags=self.w_nt)
        a(f"""v_lshl_add_u32 v{vT}, v{vG}, 3, v{vR}
        v_lshlrev_b32 v{vAA}, 6, v{vT}
        v_and_b32 v{vT}, 3, v0
        v_lshl_add_u32 v{vAA}, v{vT}, 3, v{vAA}
        v_add_u32 v{vAA}, s{sTMP+2}, v{vAA}
        s_waitcnt vmcnt(0)""")
        for blk in range(2):
            for s in range(2):
                for hf in range(2):
                    a(f"ds_read_b64_tr_b16 {vr(WA+8*blk+4*s+2*hf,2)}, v{vAA} offset:{WOT+(32*s+4*hf)*64+blk*32}")
        self.stamp(4)
        vFA, vGATE, vXF, vOUTA = 120, 121, 122, 123
        a(f"""v_lshrrev_b32 v{vT}, 3, v0
        v_lshlrev_b32 v{vFA}, 13, v{vT}
        v_and_b32 v{vT}, 7, v0
        v_lshl_add_u32 v{vFA}, v{vT}, 4, v{vFA}
        s_lshr_b32 s{sTMP}, s{sWG}, 1
        s_lshl_b32 s{sTMP}, s{sTMP}, 8
        s_and_b32 s{sTMP+1}, s{sWG}, 1
        s_lshl_b32 s{sTMP+1}, s{sTMP+1}, 7
        s_add_u32 s{sTMP}, s{sTMP}, s{sTMP+1}
        v_add_u32 v{vFA}, s{sTMP}, v{vFA}""")
        a(f"""v_bfe_u32 v{vT}, v0, 2, 1
        s_and_b32 s{sTMP}, s{sWG}, 1
        s_lshl_b32 s{sTMP}, s{sTMP}, 1
        v_add_u32 v{vT}, s{sTMP}, v{vT}
        v_lshlrev_b32 v{vOUTA}, 10, v{vT}
        v_and_b32 v{vT}, 3, v0
        v_lshl_add_u32 v{vOUTA}, v{vT}, 3, v{vOUTA}
        v_bfe_u32 v{vT}, v0, 5, 1
        v_lshl_add_u32 v{vOUTA}, v{vT}, 1, v{vOUTA}
        v_bfe_u32 v{vT}, v0, 4, 1
        v_lshl_add_u32 v{vOUTA}, v{vT}, 2, v{vOUTA}
        s_lshr_b32 s{sTMP}, s{sWG}, 1
        s_lshl_b32 s{sTMP}, s{sTMP}, 5
        v_add_u32 v{vOUTA}, s{sTMP}, v{vOUTA}
        """)
        a(f"""s_cmp_lg_u32 s{sHB}, 2
        s_cbranch_scc1 L_tail
        s_cmp_ge_u32 s{sWG}, 64
        s_cbranch_scc1 L_tail""")
        a(f"buffer_load_ushort v{vXF}, v{vOUTA}, {R(RC)}, 0 offen")
        self.lds_wait(C_ZST, 1, vZ, vT, sleep=2)
        sI = 56
        for i in range(7):
            a(f"s_mov_b32 s{sI+i}, {Z_OFF + i*65536}")
        ld = "\n".join(f"buffer_load_dwordx4 {vr(16+4*i,4)}, v{vFA}, {WSR}, s{sI+i} offen sc1" for i in range(7))
        self.glb_poll(ld, range(16, 44), sT12, 0xfff, vT, sleep=2)
        for step in (4, 2, 1):
            for i in range(step):
                if i + step < 7:
                    for r in range(4): a(f"v_add_f32 v{16+4*i+r}, v{16+4*i+r}, v{16+4*(i+step)+r}")
        self.reduce_scatter_rows(16)
        a(f"v_add_f32_dpp v16, v16, v16 row_ror:8 {DPPF}")
        a(f"v_cvt_pk_bf16_f32 v16, v16, v16\nv_and_b32 v16, 0xffff0000, v16")
        self.silu(16, 17)
        a(f"v_cvt_pk_bf16_f32 v16, v16, v16\nv_and_b32 v{vGATE}, 0xffff0000, v16")
        a(f"v_lshlrev_b32 v{vXF}, 16, v{vXF}")
        self.stamp(5)
        a.label("L_tail")
        vOA, vMLA = 14, 15
        a(f"""v_lshlrev_b32 v{vOA}, 14, v{vG}
        v_bfe_u32 v{vT}, v0, 3, 1
        v_lshl_add_u32 v{vOA}, v{vT}, 10, v{vOA}
        v_and_b32 v{vT}, 7, v0
        v_lshl_add_u32 v{vOA}, v{vT}, 4, v{vOA}
        s_lshl_b32 s{sTMP}, s{sHB}, 17
        s_lshl_b32 s{sTMP+1}, s{sKVH}, 11
        s_add_u32 s{sTMP}, s{sTMP}, s{sTMP+1}
        s_lshr_b32 s{sTMP+1}, s{sJ}, 3
        s_lshl_b32 s{sTMP+1}, s{sTMP+1}, 8
        s_add_u32 s{sTMP}, s{sTMP}, s{sTMP+1}
        s_bfe_u32 s{sTMP+1}, s{sJ}, 0x10002
        s_lshl_b32 s{sTMP+1}, s{sTMP+1}, 7
        s_add_u32 s{sTMP}, s{sTMP}, s{sTMP+1}
        s_add_u32 s{sTMP}, s{sTMP}, {O_OFF}
        s_add_u32 s{sTMP+1}, s{sTMP}, 65536
        s_lshl_b32 s{sTMP+2}, s{sHB}, 3
        s_add_u32 s{sTMP+2}, s{sTMP+2}, s{sKVH}
        s_lshl_b32 s{sTMP+2}, s{sTMP+2}, 8
        s_lshr_b32 s{sTMP+3}, s{sJ}, 3
        s_lshl_b32 s{sTMP+3}, s{sTMP+3}, 6
        s_add_u32 s{sTMP+2}, s{sTMP+2}, s{sTMP+3}
        s_add_u32 s{sTMP+2}, s{sTMP+2}, {ML_OFF}
        v_lshlrev_b32 v{vMLA}, 4, v{vG}""")
        vAW, vBR, vYA = 12 + 0, 13, 3
        a(f"""v_and_b32 v{vT}, 7, v0
        v_lshlrev_b32 v2, 4, v{vT}
        v_bfe_u32 v{vT}, v0, 3, 1
        v_lshl_add_u32 v2, v{vT}, 3, v2
        v_bfe_u32 v{vT}, v0, 5, 1
        v_lshl_add_u32 v2, v{vT}, 1, v2
        v_bfe_u32 v{vT}, v0, 4, 1
        v_lshl_add_u32 v2, v{vT}, 2, v2
        s_mul_i32 s{sTMP+3}, s{sHB}, {ALS}
        v_add_u32 v2, s{sTMP+3}, v2
        s_movk_i32 s{sTMP+3}, {ALS}
        v_mul_lo_u32 v{vBR}, v{vN3}, s{sTMP+3}
        v_lshl_add_u32 v{vBR}, v{vG}, 4, v{vBR}
        v_lshlrev_b32 v{vYA}, 6, v{vN3}
        v_lshl_add_u32 v{vYA}, v{vG}, 4, v{vYA}""")
        self.lds_wait(C_RED, 8, vZ, vT, sleep=1)
        self.stamp(6)
        self.glb_poll(f"buffer_load_dwordx4 v[16:19], v{vOA}, {WSR}, s{sTMP} offen sc1\n"
                      f"buffer_load_dwordx4 v[20:23], v{vOA}, {WSR}, s{sTMP+1} offen sc1\n"
                      f"buffer_load_dwordx4 v[24:27], v{vMLA}, {WSR}, s{sTMP+2} offen sc1",
                      range(16, 28), sT12, 0xfff, vT)
        self.stamp(7)
        a("v_max_f32 v28, v24, v26")
        self.rows_allreduce("v_max_f32", 28, vT)
        a(f"""v_sub_f32 v24, v24, v28
        v_sub_f32 v26, v26, v28
        v_mul_f32 v24, {LOG2E}, v24
        v_mul_f32 v26, {LOG2E}, v26
        v_exp_f32 v24, v24
        v_exp_f32 v26, v26
        s_nop 0
        v_mul_f32 v25, v25, v24
        v_fmac_f32 v25, v27, v26""")
        for r in range(4): a(f"v_mul_f32 v{16+r}, v{16+r}, v24")
        for r in range(4): a(f"v_fmac_f32 v{16+r}, v{20+r}, v26")
        self.rows_allreduce("v_add_f32", 25, vT)
        self.reduce_scatter_rows(16)
        a(f"""v_rcp_f32 v25, v25
        s_nop 0
        v_mul_f32 v16, v16, v25
        v_cvt_pk_bf16_f32 v16, v16, v16
        ds_write_b16 v2, v16 offset:{AL}
        s_waitcnt lgkmcnt(0)
        s_barrier
        ds_read_b128 v[16:19], v{vBR} offset:{AL}
        ds_read_b128 v[20:23], v{vBR} offset:{AL+64}""")
        a(f"""s_lshl_b32 s{sTMP}, s{sKVH}, 5
        s_add_u32 s{sTMP}, s{sTMP}, s{sJ}
        s_lshl_b32 s{sTMP}, s{sTMP}, 11
        s_lshl_b32 s{sTMP+1}, s{sHB}, 9
        s_add_u32 s{sTMP}, s{sTMP}, s{sTMP+1}
        s_add_u32 s{sTMP}, s{sTMP}, {Y_OFF}
        s_waitcnt lgkmcnt(0)""")
        for blk in range(2):
            a(f"v_mfma_f32_16x16x32_bf16 {vr(24+4*blk,4)}, {vr(WA+8*blk,4)}, v[16:19], 0")
        for blk in range(2):
            a(f"v_mfma_f32_16x16x32_bf16 {vr(24+4*blk,4)}, {vr(WA+8*blk+4,4)}, v[20:23], {vr(24+4*blk,4)}")
        self.tag_f32(range(24, 32), vTG12, sM12)
        a("s_mov_b32 exec_lo, 0x000f000f\ns_mov_b32 exec_hi, 0x000f000f")
        a(f"buffer_store_dwordx4 v[24:27], v{vYA}, {WSR}, s{sTMP} offen sc1")
        a(f"buffer_store_dwordx4 v[28:31], v{vYA}, {WSR}, s{sTMP} offen offset:256 sc1")
        a("s_mov_b64 exec, -1")
        self.stamp(8)
        a(f"""s_cmp_lg_u32 s{sHB}, 2
        s_cbranch_scc1 L_hdone
        s_cmp_ge_u32 s{sWG}, 64
        s_cbranch_scc1 L_hdone""")
        for i in range(8):
            a(f"s_mov_b32 s{sI+i}, {Y_OFF + i*65536}")
        ld = "\n".join(f"buffer_load_dwordx4 {vr(32+4*i,4)}, v{vFA}, {WSR}, s{sI+i} offen sc1" for i in range(8))
        self.glb_poll(ld, range(32, 64), sT12, 0xfff, vT)
        self.stamp(9)
        for step in (4, 2, 1):
            for i in range(step):
                for r in range(4): a(f"v_add_f32 v{32+4*i+r}, v{32+4*i+r}, v{32+4*(i+step)+r}")
        self.reduce_scatter_rows(32)
        a(f"v_add_f32_dpp v32, v32, v32 row_ror:8 {DPPF}")
        a(f"""v_cvt_pk_bf16_f32 v32, v32, v32
        v_and_b32 v32, 0xffff0000, v32
        v_mul_f32 v32, v32, v{vGATE}
        v_cvt_pk_bf16_f32 v32, v32, v32
        v_and_b32 v32, 0xffff0000, v32
        v_add_f32 v32, v32, v{vXF}
        v_cvt_pk_bf16_f32 v32, v32, v32""")
        srd(a, RA, sOUT, 4096)
        a(f"""s_mov_b32 exec_lo, 0x00ff00ff
        s_mov_b32 exec_hi, 0x00ff00ff
        buffer_store_short v32, v{vOUTA}, {R(RA)}, 0 offen
        s_mov_b64 exec, -1
        s_cmp_lg_u32 s{sWG}, 0
        s_cbranch_scc1 L_hdone
        v_mov_b32 v33, s{sT}
        s_mov_b64 exec, 1
        buffer_store_dword v33, v{vZ}, {WSR}, 0 offen sc1
        s_mov_b64 exec, -1""")
        a.label("L_hdone")
        self.stamp(10)
        self.dump_stamps(11)
        a.label("L_end")
        a("s_endpgm")

    def build(self):
        self.prologue()
        self.swave()
        self.helper()
        lines = hazard.fix(self.a.lines)
        txt = HEAD + f"; @launch grid=(256,1,1) block=(768,1,1) lds={LDS_SIZE}\n"
        txt += f""".amdgcn_target "amdgcn-amd-amdhsa--gfx950"
.text
.globl {NAME}
.p2align 8
.type {NAME},@function
{NAME}:
"""
        txt += "\n".join(lines) + "\n"
        txt += f""".section .rodata,"a"
.p2align 6
.amdhsa_kernel {NAME}
  .amdhsa_next_free_vgpr 168
  .amdhsa_next_free_sgpr 102
  .amdhsa_accum_offset 168
  .amdhsa_group_segment_fixed_size 0
  .amdhsa_kernarg_size 96
  .amdhsa_user_sgpr_count 2
  .amdhsa_user_sgpr_kernarg_segment_ptr 1
  .amdhsa_system_sgpr_workgroup_id_x 1
.end_amdhsa_kernel
"""
        return txt

def gen(**kw):
    return G(**kw).build()

if __name__ == "__main__":
    import argparse
    p = argparse.ArgumentParser()
    p.add_argument("-o", default="recurrent_scan__gqa_block_cached__glu_gated_swiglu__decode.s")
    p.add_argument("--prof", action="store_true")
    args = p.parse_args()
    open(args.o, "w").write(gen(prof=args.prof))
    print("wrote", args.o)
```

```python
import sys
from asmlib import Asm
import hazard

NAME = "recurrent_scan__gqa_block_cached__glu_gated_swiglu__decode_kernel"

Q_OFF, GU_OFF, Z_OFF, O_OFF, ML_OFF, Y_OFF, DBG_OFF = 0x40000, 0x80000, 0x280000, 0x100000, 0x180000, 0x200000, 0x400000
WS_SIZE = 0x800000
CNT, MT, LT, AL, ALS, QL = 0, 64, 192, 320, 144, 1024
PS8, PS4 = 1056, 1040
WQT = 2048
W1T = WQT + 16 * PS8
W3T = W1T + 8 * PS8
W2T = W3T + 8 * PS8
WOT = W2T + 8 * PS4
XN, XNS = WOT + 16 * PS4, 1088
assert XN + 4 * XNS <= 65536
RED = 65536
LDS_SIZE = 81920
C_XN, C_Q, C_M, C_RED, C_QST, C_HST, C_ZST, C_WO = [CNT + 4 * i for i in range(8)]
LOG2E = "0x3fb8aa3b"
SCALE = "0x3db504f3"

sWG, sWV = 2, 3
sX, sK, sV, sWQ, sWO, sW1, sW3, sW2, sOUT, sDBG, sWS = 4, 6, 8, 10, 12, 16, 18, 20, 22, 24, 26
sKVH, sJ, sT, sT12 = 28, 29, 30, 31
WSR = "s[32:35]"
RA, RB, RC = 36, 40, 44
sT16 = 48
sT8 = 49
sTMP = 50
sSPIN = 64
sHB = 65
sSTAMP = 70
sMB1, sMB2, sMB3 = 94, 96, 98

HEAD = """; Kernarg layout for this problem (96 bytes, ptrs only, base s[0:1]):
"""

def srd(a, base, ptr, size, off=None):
    if off is None:
        a(f"s_mov_b32 s{base}, s{ptr}\ns_mov_b32 s{base+1}, s{ptr+1}")
    else:
        a(f"s_add_u32 s{base}, s{ptr}, s{off}\ns_addc_u32 s{base+1}, s{ptr+1}, 0")
    a(f"s_mov_b32 s{base+2}, {size}\ns_mov_b32 s{base+3}, 0x00020000")

def R(b): return f"s[{b}:{b+3}]"
def vr(b, n): return f"v[{b}:{b+n-1}]"

DPPF = "row_mask:0xf bank_mask:0xf"

class G:
    def __init__(self, prof=False, kv_nt=True, w_nt=True, spin_lds=1 << 18, spin_glb=1 << 14,
                 nv1=16, kprio=1, qsleep=16, gusleep=16, ho_ld="sc1", ho_st="sc1", nopoll=0, exp=0):
        self.a = Asm()
        self.prof = prof
        self.kv_nt = " nt" if kv_nt else ""
        self.w_nt = " nt" if w_nt else ""
        self.spin_lds = spin_lds
        self.spin_glb = spin_glb
        self.nstamp = 0
        self.nv1 = nv1
        self.exp = exp
        self.nopoll = nopoll
        self.kprio = kprio
        self.qsleep = qsleep
        self.gusleep = gusleep
        self.ld = ho_ld
        self.st = ho_st

    def stamp(self, i):
        if self.prof:
            self.a(f"s_memrealtime s[{sSTAMP+2*i}:{sSTAMP+2*i+1}]")

    def dump_stamps(self, n, vt=4):
        if not self.prof: return
        a = self.a
        a("s_waitcnt lgkmcnt(0)")
        a(f"v_mov_b32 v{vt}, 0")
        for i in range(n):
            a(f"v_writelane_b32 v{vt}, s{sSTAMP+2*i}, {i}")
        a(f"""s_mul_i32 s{sTMP}, s{sWG}, 12
        s_add_u32 s{sTMP}, s{sTMP}, s{sWV}
        s_lshl_b32 s{sTMP}, s{sTMP}, 6
        s_add_u32 s{sTMP}, s{sTMP}, {DBG_OFF}
        v_mbcnt_lo_u32_b32 v{vt+1}, -1, 0
        v_mbcnt_hi_u32_b32 v{vt+1}, -1, v{vt+1}
        v_lshlrev_b32 v{vt+1}, 2, v{vt+1}
        v_add_u32 v{vt+1}, s{sTMP}, v{vt+1}
        s_mov_b64 exec, 0xffff
        buffer_store_dword v{vt}, v{vt+1}, {WSR}, 0 offen
        s_mov_b64 exec, -1""")

    def rows_allreduce(self, op, x, t):
        a = self.a
        a(f"""v_mov_b32 v{t}, v{x}
        v_permlane32_swap_b32 v{x}, v{t}
        {op} v{x}, v{x}, v{t}
        v_mov_b32 v{t}, v{x}
        v_permlane16_swap_b32 v{x}, v{t}
        {op} v{x}, v{x}, v{t}""")

    def quad_allreduce(self, op, x):
        a = self.a
        a(f"{op}_dpp v{x}, v{x}, v{x} quad_perm:[1,0,3,2] {DPPF}")
        a(f"{op}_dpp v{x}, v{x}, v{x} quad_perm:[2,3,0,1] {DPPF}")

    def wave_allreduce_add(self, x, t):
        a = self.a
        self.quad_allreduce("v_add_f32", x)
        a(f"v_add_f32_dpp v{x}, v{x}, v{x} row_half_mirror {DPPF}")
        a(f"v_add_f32_dpp v{x}, v{x}, v{x} row_mirror {DPPF}")
        self.rows_allreduce("v_add_f32", x, t)

    def lds_signal(self, cnt, vzero, vone):
        self.a(f"""s_mov_b64 exec, 1
        ds_add_u32 v{vzero}, v{vone} offset:{cnt}
        s_mov_b64 exec, -1""")

    def lds_wait(self, cnt, val, vzero, vt, sleep=1, extra=None, stage=0):
        a = self.a
        L = a.newlabel("L_spin"); D = a.newlabel("L_spun")
        a(f"s_mov_b32 s{sSPIN}, {self.spin_lds}")
        a.label(L)
        a(f"ds_read_b32 v{vt}, v{vzero} offset:{cnt}")
        if extra: a(extra)
        a(f"""s_waitcnt lgkmcnt(0)
        v_cmp_le_u32 vcc, {val}, v{vt}
        s_cbranch_vccnz {D}""")
        if sleep: a(f"s_sleep {sleep}")
        a(f"""s_sub_u32 s{sSPIN}, s{sSPIN}, 1
        s_cmp_lg_u32 s{sSPIN}, 0
        s_cbranch_scc1 {L}""")
        a.label(D)

    def glb_poll(self, loads, regs, tagv, maskbits, vt, sleep=0, early=False):
        a = self.a
        if early and self.nopoll == 1: return
        if early and self.nopoll == 2:
            a(loads); a("s_waitcnt vmcnt(0)"); return
        L = a.newlabel("L_poll"); D = a.newlabel("L_polled")
        a(f"s_mov_b32 s{sSPIN}, {self.spin_glb}")
        a.label(L)
        a(loads)
        a("s_waitcnt vmcnt(0)")
        for r in regs:
            a(f"v_xor_b32 v{r}, s{tagv}, v{r}")
        rs = list(regs)
        a(f"v_or3_b32 v{vt}, v{rs[0]}, v{rs[1]}, v{rs[2]}")
        i = 3
        while i + 1 < len(rs):
            a(f"v_or3_b32 v{vt}, v{vt}, v{rs[i]}, v{rs[i+1]}"); i += 2
        if i < len(rs):
            a(f"v_or_b32 v{vt}, v{vt}, v{rs[i]}")
        a(f"""v_and_b32 v{vt}, {hex(maskbits)}, v{vt}
        v_cmp_ne_u32 vcc, 0, v{vt}
        s_cbranch_vccz {D}""")
        if sleep: a(f"s_sleep {sleep}")
        a(f"""s_sub_u32 s{sSPIN}, s{sSPIN}, 1
        s_cmp_lg_u32 s{sSPIN}, 0
        s_cbranch_scc1 {L}""")
        a.label(D)

    def tag_f32(self, regs, vtag, smask, half=0x800):
        a = self.a
        for r in regs:
            a(f"v_add_u32 v{r}, {hex(half)}, v{r}")
        for r in regs:
            a(f"v_bfi_b32 v{r}, s{smask}, v{vtag}, v{r}")

    def reduce_scatter_rows(self, r0):
        a = self.a
        a(f"""v_permlane32_swap_b32 v{r0}, v{r0+1}
        v_permlane32_swap_b32 v{r0+2}, v{r0+3}
        v_add_f32 v{r0}, v{r0}, v{r0+1}
        v_add_f32 v{r0+2}, v{r0+2}, v{r0+3}
        v_permlane16_swap_b32 v{r0}, v{r0+2}
        v_add_f32 v{r0}, v{r0}, v{r0+2}""")

    def silu(self, x, t):
        a = self.a
        a(f"""v_mul_f32 v{t}, 0xbfb8aa3b, v{x}
        v_exp_f32 v{t}, v{t}
        v_add_f32 v{t}, 1.0, v{t}
        v_rcp_f32 v{t}, v{t}
        v_mul_f32 v{x}, v{x}, v{t}""")

    def bf16r(self, x, y, t):
        a = self.a
        a(f"""v_cvt_pk_bf16_f32 v{t}, v{x}, v{y}
        v_lshlrev_b32 v{x}, 16, v{t}
        v_and_b32 v{y}, 0xffff0000, v{t}""")

    def prologue(self):
        a = self.a
        a(f"""s_cmp_ge_u32 s{sWG}, 256
        s_cbranch_scc1 L_end
        s_load_dwordx16 s[4:19], s[0:1], 0
        s_load_dwordx8 s[20:27], s[0:1], 64
        v_lshrrev_b32 v1, 6, v0
        v_and_b32 v0, 63, v0
        v_readfirstlane_b32 s{sWV}, v1
        s_and_b32 s{sKVH}, s{sWG}, 7
        s_lshr_b32 s{sJ}, s{sWG}, 3""")
        self.stamp(0)
        a(f"""s_cmp_lg_u32 s{sWV}, 0
        s_cbranch_scc1 L_noclr
        v_lshlrev_b32 v1, 2, v0
        v_mov_b32 v2, 0
        s_mov_b64 exec, 0xffff
        ds_write_b32 v1, v2 offset:{CNT}
        s_mov_b64 exec, -1""")
        a.label("L_noclr")
        a(f"""s_cmp_ge_u32 s{sWV}, 8
        s_cbranch_scc1 L_helper""")

    def tags(self):
        a = self.a
        a(f"""s_add_u32 s{sT}, s{sT}, 1
        s_and_b32 s{sT12}, s{sT}, 0xfff
        s_and_b32 s{sT16}, s{sT}, 0xffff""")

    def swave(self):
        a = self.a
        vKO, vVO, vM0, vM1, vZ, vONE, vT, vT2 = 1, 2, 3, 4, 5, 6, 7, 144
        KB, VB, QB, XB, ACC = 8, 72, 136, 140, 152
        vM, vL, vAD = 145, 146, 147
        sO1, sO2, sO3 = 52, 53, 54
        sM1, sM2, sM3 = 56, 58, 60
        a(f"""v_and_b32 v{vT}, 15, v0
        v_lshrrev_b32 v{vT}, 2, v{vT}
        v_lshlrev_b32 v{vKO}, 8, v{vT}
        v_lshrrev_b32 v{vT}, 4, v0
        v_lshl_add_u32 v{vKO}, v{vT}, 6, v{vKO}
        v_and_b32 v{vT}, 3, v0
        v_lshl_add_u32 v{vKO}, v{vT}, 4, v{vKO}
        v_lshlrev_b32 v{vVO}, 4, v0
        v_mov_b32 v{vZ}, 0
        v_mov_b32 v{vONE}, 1
        s_lshr_b32 s{sTMP}, s{sJ}, 3
        s_lshl_b32 s{sTMP}, s{sTMP}, 3
        s_add_u32 s{sTMP}, s{sTMP}, s{sKVH}
        s_lshl_b32 s{sTMP}, s{sTMP}, 20
        s_and_b32 s{sTMP+1}, s{sJ}, 7
        s_lshl_b32 s{sTMP+1}, s{sTMP+1}, 17
        s_add_u32 s{sTMP}, s{sTMP}, s{sTMP+1}
        s_lshl_b32 s{sTMP+1}, s{sWV}, 14
        s_add_u32 s{sTMP}, s{sTMP}, s{sTMP+1}
        s_mov_b32 s{sO1}, 4096
        s_mov_b32 s{sO2}, 8192
        s_mov_b32 s{sO3}, 12288""")
        a("s_waitcnt lgkmcnt(0)\ns_barrier")
        srd(a, RA, sK, 16384, sTMP)
        srd(a, RB, sV, 16384, sTMP)
        if self.kprio: a(f"s_setprio {self.kprio}")
        so = ["0", f"s{sO1}", f"s{sO2}", f"s{sO3}"]
        for i in range(16):
            a(f"buffer_load_dwordx4 {vr(KB+4*i,4)}, v{vKO}, {R(RA)}, {so[i//4]} offen offset:{(i%4)*1024}{self.kv_nt}")
            if i == 0:
                srd(a, 32, sWS, WS_SIZE)
                a(f"s_load_dword s{sT}, s[{sWS}:{sWS+1}], 0")
        if self.kprio: a("s_setprio 0")
        for i in range(self.nv1):
            a(f"buffer_load_dwordx4 {vr(VB+4*i,4)}, v{vVO}, {R(RB)}, {so[i//4]} offen offset:{(i%4)*1024}{self.kv_nt}")
        self.stamp(1)
        if self.exp:
            a("s_waitcnt vmcnt(0)")
            for i in range(2, 9): self.stamp(i)
            a("s_branch L_sdone")
        a(f"""v_and_b32 v{vT}, 3, v0
        v_mov_b32 v{vT2}, 0xffff
        s_mov_b32 s{sM1}, 0x22222222
        s_mov_b32 s{sM1+1}, 0x22222222
        s_mov_b32 s{sM2}, 0x44444444
        s_mov_b32 s{sM2+1}, 0x44444444
        s_mov_b32 s{sM3}, 0x88888888
        s_mov_b32 s{sM3+1}, 0x88888888
        v_cmp_eq_u32 vcc, 0, v{vT}
        v_mov_b32 v{vM1}, 0xffff0000
        v_cndmask_b32 v{vM0}, 0, v{vT2}, vcc
        v_cndmask_b32 v{vM0}, v{vM0}, v{vM1}, s[{sM1}:{sM1+1}]
        v_cndmask_b32 v{vT}, 0, v{vT2}, s[{sM2}:{sM2+1}]
        v_cndmask_b32 v{vM1}, v{vT}, v{vM1}, s[{sM3}:{sM3+1}]""")
        a(f"""v_lshrrev_b32 v{vT}, 2, v0
        v_and_b32 v{vT}, 3, v{vT}
        v_lshlrev_b32 v{vAD}, 8, v{vT}
        v_lshlrev_b32 v{vT2}, 5, v{vT}
        v_lshrrev_b32 v{vT}, 4, v0
        v_lshl_add_u32 v{vAD}, v{vT}, 6, v{vAD}
        v_and_b32 v{vT}, 3, v0
        v_lshl_add_u32 v{vAD}, v{vT}, 4, v{vAD}""")
        a("s_waitcnt lgkmcnt(0)")
        self.tags()
        a(f"s_waitcnt vmcnt({self.nv1})")
        self.stamp(2)
        self.lds_wait(C_Q, 1, vZ, vT, sleep=1, extra=f"ds_read_b128 {vr(QB,4)}, v{vAD} offset:{QL}")
        self.stamp(3)
        for i in range(16):
            k = KB + 4 * i
            a(f"v_mfma_f32_16x16x32_bf16 {vr(k,4)}, {vr(k,4)}, {vr(QB,4)}, 0")
        for u in range(4):
            for t in range(4):
                k = KB + 4 * (4 * u + t)
                a(f"v_add_f32_dpp v{k+t}, v{k+(t^1)}, v{k+t} quad_perm:[1,0,3,2] {DPPF}")
                a(f"v_add_f32_dpp v{k+(t^2)}, v{k+(t^3)}, v{k+(t^2)} quad_perm:[1,0,3,2] {DPPF}")
            for t in range(4):
                k = KB + 4 * (4 * u + t)
                a(f"v_add_f32_dpp v{k+t}, v{k+(t^2)}, v{k+t} quad_perm:[2,3,0,1] {DPPF}")
            k0 = KB + 16 * u
            a(f"v_cndmask_b32 v{XB+u}, v{k0}, v{k0+4+1}, s[{sM1}:{sM1+1}]")
            a(f"v_cndmask_b32 v{XB+u}, v{XB+u}, v{k0+8+2}, s[{sM2}:{sM2+1}]")
            a(f"v_cndmask_b32 v{XB+u}, v{XB+u}, v{k0+12+3}, s[{sM3}:{sM3+1}]")
        self.bf16r(XB, XB + 1, vT); self.bf16r(XB + 2, XB + 3, vM)
        for u in range(4):
            a(f"v_mul_f32 v{XB+u}, {SCALE}, v{XB+u}")
        self.bf16r(XB, XB + 1, vT); self.bf16r(XB + 2, XB + 3, vM)
        a(f"""v_max3_f32 v{vM}, v{XB}, v{XB+1}, v{XB+2}
        v_max_f32 v{vM}, v{vM}, v{XB+3}""")
        self.quad_allreduce("v_max_f32", vM)
        self.rows_allreduce("v_max_f32", vM, vT)
        a(f"""s_lshl_b32 s{sTMP}, s{sWV}, 2
        v_add_u32 v{vAD}, s{sTMP}, v{vT2}
        ds_write_b32 v{vAD}, v{vM} offset:{MT}""")
        self.lds_signal(C_M, vZ, vONE)
        self.stamp(4)
        for i in range(self.nv1, 16):
            a(f"buffer_load_dwordx4 {vr(VB+4*i,4)}, v{vVO}, {R(RB)}, {so[i//4]} offen offset:{(i%4)*1024}{self.kv_nt}")
        self.stamp(5)
        tb = KB + 40
        self.lds_wait(C_M, 8, vZ, vT, sleep=1,
                      extra=f"ds_read_b128 {vr(tb,4)}, v{vT2} offset:{MT}\nds_read_b128 {vr(tb+4,4)}, v{vT2} offset:{MT+16}")
        a(f"""v_max3_f32 v{vM}, v{tb}, v{tb+1}, v{tb+2}
        v_max3_f32 v{vM}, v{vM}, v{tb+3}, v{tb+4}
        v_max3_f32 v{vM}, v{vM}, v{tb+5}, v{tb+6}
        v_max_f32 v{vM}, v{vM}, v{tb+7}""")
        for u in range(4): a(f"v_sub_f32 v{XB+u}, v{XB+u}, v{vM}")
        for u in range(4): a(f"v_mul_f32 v{XB+u}, {LOG2E}, v{XB+u}")
        for u in range(4): a(f"v_exp_f32 v{XB+u}, v{XB+u}")
        a(f"""v_add_f32 v{vL}, v{XB}, v{XB+1}
        v_add_f32 v{vT}, v{XB+2}, v{XB+3}
        v_add_f32 v{vL}, v{vL}, v{vT}""")
        for u in range(4): a(f"v_cvt_pk_bf16_f32 v{XB+u}, v{XB+u}, v{XB+u}")
        self.quad_allreduce("v_add_f32", vL)
        for i in range(16):
            u, t = i // 4, i % 4
            a(f"v_and_b32_dpp v{KB+2*i}, v{XB+u}, v{vM0} quad_perm:[{t},{t},{t},{t}] {DPPF}")
            a(f"v_and_b32_dpp v{KB+2*i+1}, v{XB+u}, v{vM1} quad_perm:[{t},{t},{t},{t}] {DPPF}")
        self.rows_allreduce("v_add_f32", vL, vT)
        a(f"ds_write_b32 v{vAD}, v{vL} offset:{LT}")
        self.stamp(6)
        for i in range(16):
            a(f"s_waitcnt vmcnt({15-i})")
            s = (i & 1) * 8
            for h in range(2):
                d = ACC + s + 4 * h
                c = "0" if i < 2 else vr(d, 4)
                a(f"v_mfma_f32_16x16x16_bf16 {vr(d,4)}, {vr(KB+2*i,2)}, {vr(VB+4*i+2*h,2)}, {c}")
        self.stamp(7)
        a(f"""v_lshlrev_b32 v{vAD}, 4, v0
        s_lshl_b32 s{sTMP}, s{sWV}, 11
        s_add_u32 s{sTMP}, s{sTMP}, {RED}
        v_add_u32 v{vT}, s{sTMP}, v{vAD}""")
        for r in range(8):
            a(f"v_add_f32 v{ACC+r}, v{ACC+r}, v{ACC+8+r}")
        a(f"""ds_write_b128 v{vT}, {vr(ACC,4)}
        ds_write_b128 v{vT}, {vr(ACC+4,4)} offset:1024
        s_mov_b64 exec, 1
        ds_add_rtn_u32 v{vT}, v{vZ}, v{vONE} offset:{C_RED}
        s_mov_b64 exec, -1
        s_waitcnt lgkmcnt(0)
        v_readfirstlane_b32 s{sTMP}, v{vT}
        s_cmp_lg_u32 s{sTMP}, 7
        s_cbranch_scc1 L_sdone""")
        a(f"v_add_u32 v{vAD}, {RED}, v{vAD}")
        for w in range(8):
            for j in range(2):
                a(f"ds_read_b128 {vr(KB+8*w+4*j,4)}, v{vAD} offset:{w*2048+j*1024}")
        a(f"ds_read_b128 {vr(VB,4)}, v{vT2} offset:{LT}\nds_read_b128 {vr(VB+4,4)}, v{vT2} offset:{LT+16}")
        vOA, vMLA, vTG = 136, 137, 138
        a(f"""s_lshl_b32 s{sTMP}, s{sWG}, 11
        s_add_u32 s{sTMP}, s{sTMP}, {O_OFF}
        v_lshlrev_b32 v{vOA}, 4, v0
        v_add_u32 v{vOA}, s{sTMP}, v{vOA}
        s_lshr_b32 s{sTMP}, s{sJ}, 3
        s_lshl_b32 s{sTMP}, s{sTMP}, 3
        s_add_u32 s{sTMP}, s{sTMP}, s{sKVH}
        s_lshl_b32 s{sTMP}, s{sTMP}, 8
        s_and_b32 s{sTMP+1}, s{sJ}, 3
        s_lshl_b32 s{sTMP+1}, s{sTMP+1}, 4
        s_add_u32 s{sTMP}, s{sTMP}, s{sTMP+1}
        s_bfe_u32 s{sTMP+1}, s{sJ}, 0x10002
        s_lshl_b32 s{sTMP+1}, s{sTMP+1}, 3
        s_add_u32 s{sTMP}, s{sTMP}, s{sTMP+1}
        s_add_u32 s{sTMP}, s{sTMP}, {ML_OFF}
        v_lshl_add_u32 v{vMLA}, v{vT2}, 1, s{sTMP}
        v_mov_b32 v{vTG}, s{sT12}
        s_mov_b32 s{sTMP+2}, 0xfff
        s_waitcnt lgkmcnt(0)""")
        for step in (4, 2, 1):
            for w in range(0, step):
                for r in range(8):
                    a(f"v_add_f32 v{KB+8*w+r}, v{KB+8*w+r}, v{KB+8*(w+step)+r}")
        self.tag_f32(range(KB, KB + 8), vTG, sTMP + 2)
        a(f"buffer_store_dwordx4 {vr(KB,4)}, v{vOA}, {WSR}, 0 offen {self.st}")
        a(f"buffer_store_dwordx4 {vr(KB+4,4)}, v{vOA}, {WSR}, 0 offen offset:1024 {self.st}")
        a(f"""v_add_f32 v{VB}, v{VB}, v{VB+1}
        v_add_f32 v{VB+2}, v{VB+2}, v{VB+3}
        v_add_f32 v{VB+4}, v{VB+4}, v{VB+5}
        v_add_f32 v{VB+6}, v{VB+6}, v{VB+7}
        v_add_f32 v{VB}, v{VB}, v{VB+2}
        v_add_f32 v{VB+4}, v{VB+4}, v{VB+6}
        v_add_f32 v{VB+1}, v{VB}, v{VB+4}
        v_or_b32 v{VB}, v{vM}, v{vTG}""")
        self.tag_f32([VB + 1], vTG, sTMP + 2)
        a(f"""s_mov_b64 exec, 0x1111
        buffer_store_dwordx2 {vr(VB,2)}, v{vMLA}, {WSR}, 0 offen {self.st}
        s_mov_b64 exec, -1""")
        self.stamp(8)
        a.label("L_sdone")
        self.dump_stamps(9)
        a("s_endpgm")

    def dma(self, n, srdb, voff, soff_reg, soff_step, lds_base, lds_step=1024, flags=""):
        a = self.a
        if self.exp == 2: return
        for i in range(n):
            a(f"s_mov_b32 m0, {lds_base + i*lds_step}" if isinstance(lds_base, int) else
              f"s_add_u32 m0, s{lds_base[0]}, {lds_base[1] + i*lds_step}")
            if i > 0:
                a(f"s_add_u32 s{soff_reg}, s{soff_reg}, {soff_step}")
            a(f"buffer_load_dwordx4 v{voff}, {R(srdb)}, s{soff_reg} offen{flags} lds")

    def sel4(self, dst, d0, d1, d2, d3):
        a = self.a
        for r in range(4): a(f"v_cndmask_b32 v{dst+r}, v{d0+r}, v{d1+r}, s[{sMB1}:{sMB1+1}]")
        for r in range(4): a(f"v_cndmask_b32 v{dst+r}, v{dst+r}, v{d2+r}, s[{sMB2}:{sMB2+1}]")
        for r in range(4): a(f"v_cndmask_b32 v{dst+r}, v{dst+r}, v{d3+r}, s[{sMB3}:{sMB3+1}]")

    def helper(self):
        a = self.a
        vZ, vONE, vT, vA, vD8, vD4 = 5, 6, 7, 1, 2, 3
        a.label("L_helper")
        sSL = sTMP + 4
        a(f"""s_setprio 3
        s_sub_u32 s{sHB}, s{sWV}, 8
        v_mov_b32 v{vZ}, 0
        v_mov_b32 v{vONE}, 1
        v_lshlrev_b32 v{vA}, 4, v0
        s_lshl_b32 s{sTMP}, s{sHB}, 10
        v_add_u32 v{vA}, s{sTMP}, v{vA}
        s_mul_i32 s{sSL}, s{sKVH}, 28
        s_add_u32 s{sSL}, s{sSL}, s{sJ}
        v_bfe_u32 v13, v0, 2, 2
        v_and_b32 v14, 3, v0
        v_lshlrev_b32 v14, 4, v14
        v_lshrrev_b32 v{vT}, 5, v0
        v_lshl_add_u32 v{vD8}, v{vT}, 2, v13
        v_bfe_u32 v{vT}, v0, 4, 1
        v_lshl_add_u32 v12, v{vT}, 6, v14
        v_lshrrev_b32 v{vT}, 4, v0
        v_lshl_add_u32 v{vD4}, v{vT}, 6, v14
        v_lshl_add_u32 v{vD4}, v13, 10, v{vD4}
        s_waitcnt lgkmcnt(0)""")
        srd(a, RC, sX, 4096)
        a(f"buffer_load_dwordx4 v[8:11], v{vA}, {R(RC)}, 0 offen")
        srd(a, 32, sWS, WS_SIZE)
        a(f"s_load_dword s{sT}, s[{sWS}:{sWS+1}], 0")
        def wo_dma():
            srd(a, RB, sWO, 4096 * 1024)
            a(f"""s_lshl_b32 s{sTMP}, s{sKVH}, 19
            s_lshr_b32 s{sTMP+1}, s{sJ}, 2
            s_lshl_b32 s{sTMP+1}, s{sTMP+1}, 16
            s_add_u32 s{sTMP}, s{sTMP}, s{sTMP+1}
            s_and_b32 s{sTMP+1}, s{sJ}, 3
            s_lshl_b32 s{sTMP+1}, s{sTMP+1}, 8
            s_add_u32 s{sTMP}, s{sTMP}, s{sTMP+1}
            s_lshl_b32 s{sTMP+1}, s{sHB}, 14
            s_add_u32 s{sTMP}, s{sTMP}, s{sTMP+1}
            s_mul_i32 s{sTMP+2}, s{sHB}, {4*PS4}""")
            self.dma(4, RB, vD4, sTMP, 4096, (sTMP + 2, WOT), lds_step=PS4, flags=self.w_nt)
        a(f"""s_cmp_eq_u32 s{sHB}, 0
        s_cbranch_scc1 L_h0a
        s_cmp_eq_u32 s{sHB}, 2
        s_cbranch_scc1 L_h2a
        s_cmp_ge_u32 s{sJ}, 28
        s_cbranch_scc1 L_h2a
        s_cmp_eq_u32 s{sHB}, 1
        s_cbranch_scc1 L_h1a""")
        srd(a, RA, sW2, 1792 * 1024)
        a(f"""s_lshr_b32 s{sTMP}, s{sSL}, 2
        s_lshl_b32 s{sTMP}, s{sTMP}, 15
        s_and_b32 s{sTMP+1}, s{sSL}, 3
        s_lshl_b32 s{sTMP+1}, s{sTMP+1}, 8
        s_add_u32 s{sTMP}, s{sTMP}, s{sTMP+1}""")
        self.dma(8, RA, vD4, sTMP, 4096, W2T, lds_step=PS4, flags=self.w_nt)
        wo_dma()
        a("s_barrier\ns_waitcnt vmcnt(12)\ns_branch L_ln")
        a.label("L_h1a")
        srd(a, RA, sW1, 512 * 3584)
        srd(a, RB, sW3, 512 * 3584)
        a(f"""s_movk_i32 s{sTMP+1}, 3584
        v_mul_lo_u32 v{vA}, v{vD8}, s{sTMP+1}
        v_add_u32 v{vA}, v12, v{vA}
        s_and_b32 s{sTMP}, s{sSL}, 7
        s_mul_i32 s{sTMP}, s{sTMP}, {64*3584}
        s_lshr_b32 s{sTMP+1}, s{sSL}, 3
        s_lshl_b32 s{sTMP+1}, s{sTMP+1}, 7
        s_add_u32 s{sTMP}, s{sTMP}, s{sTMP+1}
        s_mov_b32 s{sTMP+3}, s{sTMP}""")
        self.dma(8, RA, vA, sTMP, 8 * 3584, W1T, lds_step=PS8, flags=self.w_nt)
        self.dma(8, RB, vA, sTMP + 3, 8 * 3584, W3T, lds_step=PS8, flags=self.w_nt)
        wo_dma()
        a("s_barrier\ns_waitcnt vmcnt(20)\ns_branch L_ln")
        a.label("L_h0a")
        srd(a, RA, sWQ, 512 * 8192)
        a(f"""v_lshl_add_u32 v{vA}, v{vD8}, 13, v12
        s_and_b32 s{sTMP}, s{sJ}, 3
        s_lshl_b32 s{sTMP}, s{sTMP}, 20
        s_lshl_b32 s{sTMP+1}, s{sKVH}, 10
        s_add_u32 s{sTMP}, s{sTMP}, s{sTMP+1}
        s_lshr_b32 s{sTMP+1}, s{sJ}, 2
        s_lshl_b32 s{sTMP+1}, s{sTMP+1}, 7
        s_add_u32 s{sTMP}, s{sTMP}, s{sTMP+1}""")
        self.dma(16, RA, vA, sTMP, 8 * 8192, WQT, lds_step=PS8, flags=self.w_nt)
        wo_dma()
        a("s_barrier\ns_waitcnt vmcnt(20)\ns_branch L_ln")
        a.label("L_h2a")
        wo_dma()
        a("s_barrier\ns_waitcnt vmcnt(4)")
        a.label("L_ln")
        self.stamp(1)
        if self.exp:
            a("s_waitcnt vmcnt(0)")
            for i in range(2, 11): self.stamp(i)
            a("s_branch L_hdone")
        X = 12
        for i in range(4):
            a(f"v_lshlrev_b32 v{X+2*i}, 16, v{8+i}\nv_and_b32 v{X+2*i+1}, 0xffff0000, v{8+i}")
        S, S2 = 20, 21
        a(f"""v_add_f32 v{S}, v{X}, v{X+1}
        v_add_f32 v{S2}, v{X+2}, v{X+3}
        v_add_f32 v22, v{X+4}, v{X+5}
        v_add_f32 v23, v{X+6}, v{X+7}
        v_add_f32 v{S}, v{S}, v{S2}
        v_add_f32 v22, v22, v23
        v_add_f32 v{S}, v{S}, v22""")
        self.wave_allreduce_add(S, vT)
        a(f"v_mul_f32 v{S}, 0x3b000000, v{S}")
        for i in range(8): a(f"v_sub_f32 v{24+i}, v{X+i}, v{S}")
        a(f"v_mul_f32 v{S2}, v24, v24\nv_mul_f32 v22, v25, v25")
        for i in range(2, 8, 2):
            a(f"v_fmac_f32 v{S2}, v{24+i}, v{24+i}\nv_fmac_f32 v22, v{25+i}, v{25+i}")
        a(f"v_add_f32 v{S2}, v{S2}, v22")
        self.wave_allreduce_add(S2, vT)
        a(f"v_mul_f32 v{S2}, 0x3b000000, v{S2}")
        self.bf16r(S, S2, vT)
        a(f"v_add_f32 v{S2}, 0x3727c5ac, v{S2}")
        a(f"v_cvt_pk_bf16_f32 v{S2}, v{S2}, v{S2}\nv_and_b32 v{S2}, 0xffff0000, v{S2}")
        a(f"v_sqrt_f32 v{S2}, v{S2}")
        a(f"v_cvt_pk_bf16_f32 v{S2}, v{S2}, v{S2}\nv_and_b32 v{S2}, 0xffff0000, v{S2}")
        a(f"v_rcp_f32 v22, v{S2}")
        for i in range(8): a(f"v_sub_f32 v{X+i}, v{X+i}, v{S}")
        for i in range(0, 8, 2): self.bf16r(X + i, X + i + 1, vT)
        for i in range(8): a(f"v_mul_f32 v{24+i}, v{X+i}, v22")
        for i in range(8): a(f"v_fma_f32 v{X+i}, -v{24+i}, v{S2}, v{X+i}")
        for i in range(8): a(f"v_fmac_f32 v{24+i}, v{X+i}, v22")
        for i in range(4): a(f"v_cvt_pk_bf16_f32 v{8+i}, v{24+2*i}, v{25+2*i}")
        a(f"""s_mul_i32 s{sTMP}, s{sHB}, {XNS}
        v_lshlrev_b32 v{vA}, 4, v0
        v_add_u32 v{vA}, s{sTMP}, v{vA}
        ds_write_b128 v{vA}, v[8:11] offset:{XN}""")
        self.lds_signal(C_XN, vZ, vONE)
        a("s_waitcnt lgkmcnt(0)")
        self.tags()
        self.stamp(2)
        vN3, vG, vR = 8, 9, 10
        vTG12, sM12 = 4, 66
        vTA8, vTA4, vBA = 12, 13, 14
        a(f"""v_and_b32 v{vN3}, 3, v0
        v_lshrrev_b32 v{vG}, 4, v0
        v_bfe_u32 v{vR}, v0, 2, 2
        v_mov_b32 v{vTG12}, s{sT12}
        s_mov_b32 s{sM12}, 0xfff
        s_mov_b32 s{sMB1}, 0x00f000f0
        s_mov_b32 s{sMB1+1}, 0x00f000f0
        s_mov_b32 s{sMB2}, 0x0f000f00
        s_mov_b32 s{sMB2+1}, 0x0f000f00
        s_mov_b32 s{sMB3}, 0xf000f000
        s_mov_b32 s{sMB3+1}, 0xf000f000
        v_lshlrev_b32 v{vT}, 3, v{vN3}
        v_lshl_add_u32 v{vT}, v{vR}, 6, v{vT}
        s_movk_i32 s{sTMP}, {PS8}
        v_mad_u32_u24 v{vTA8}, v{vG}, s{sTMP}, v{vT}
        s_movk_i32 s{sTMP}, {2*PS4}
        v_mad_u32_u24 v{vTA4}, v{vG}, s{sTMP}, v{vT}
        s_movk_i32 s{sTMP}, {XNS}
        v_mul_u32_u24 v{vBA}, s{sTMP}, v{vN3}
        v_lshl_add_u32 v{vBA}, v{vG}, 4, v{vBA}""")
        a(f"""s_cmp_eq_u32 s{sHB}, 2
        s_cbranch_scc1 L_h2b
        s_cmp_eq_u32 s{sHB}, 3
        s_cbranch_scc1 L_h3b
        s_cmp_eq_u32 s{sHB}, 0
        s_cbranch_scc1 L_h0b
        s_cmp_ge_u32 s{sJ}, 28
        s_cbranch_scc1 L_wo""")
        AW, BW, D0 = 16, 80, 96
        def trA8(base, nks, blk, s):
            return base + 4 * s * PS8 + (blk >> 1) * 256 + (blk & 1) * 32
        a("s_waitcnt vmcnt(4)")
        for mat in range(2):
            for s in range(2):
                for blk in range(4):
                    r = AW + 4 * (mat * 8 + s * 4 + blk)
                    off = trA8(W3T if mat else W1T, 2, blk, s)
                    a(f"ds_read_b64_tr_b16 {vr(r,2)}, v{vTA8} offset:{off}")
                    a(f"ds_read_b64_tr_b16 {vr(r+2,2)}, v{vTA8} offset:{off+512}")
        a(f"""s_and_b32 s{sTMP}, s{sSL}, 7
        s_lshl_b32 s{sTMP}, s{sTMP}, 7
        v_add_u32 v{vBA}, s{sTMP}, v{vBA}""")
        a(f"""v_lshrrev_b32 v{vT}, 1, v{vR}
        v_lshlrev_b32 v{vA}, 13, v{vT}
        v_and_b32 v{vT}, 1, v{vR}
        v_lshl_add_u32 v{vA}, v{vT}, 9, v{vA}
        v_lshrrev_b32 v{vT}, 1, v{vG}
        v_lshl_add_u32 v{vA}, v{vT}, 8, v{vA}
        v_and_b32 v{vT}, 1, v{vG}
        v_lshl_add_u32 v{vA}, v{vT}, 6, v{vA}
        v_lshl_add_u32 v{vA}, v{vN3}, 4, v{vA}
        s_lshr_b32 s{sTMP}, s{sSL}, 3
        s_lshl_b32 s{sTMP}, s{sTMP}, 14
        s_bfe_u32 s{sTMP+1}, s{sSL}, 0x20001
        s_lshl_b32 s{sTMP+1}, s{sTMP+1}, 11
        s_add_u32 s{sTMP}, s{sTMP}, s{sTMP+1}
        s_and_b32 s{sTMP+1}, s{sSL}, 1
        s_lshl_b32 s{sTMP+1}, s{sTMP+1}, 7
        s_add_u32 s{sTMP}, s{sTMP}, s{sTMP+1}
        s_add_u32 s{sTMP}, s{sTMP}, {GU_OFF}""")
        self.lds_wait(C_XN, 4, vZ, vT, sleep=0)
        for s in range(2):
            a(f"ds_read_b128 {vr(BW+4*s,4)}, v{vBA} offset:{XN+s*64}")
        a("s_waitcnt lgkmcnt(0)")
        for s in range(2):
            for mat in range(2):
                for blk in range(4):
                    d = D0 + 4 * (mat * 4 + blk)
                    c = "0" if s == 0 else vr(d, 4)
                    a(f"v_mfma_f32_16x16x32_bf16 {vr(d,4)}, {vr(AW+4*(mat*8+s*4+blk),4)}, {vr(BW+4*s,4)}, {c}")
        for mat in range(2):
            self.sel4(16 + 4 * mat, D0 + 16 * mat, D0 + 16 * mat + 4, D0 + 16 * mat + 8, D0 + 16 * mat + 12)
        self.tag_f32(range(16, 24), vTG12, sM12)
        for mat in range(2):
            a(f"buffer_store_dwordx4 {vr(16+4*mat,4)}, v{vA}, {WSR}, s{sTMP} offen offset:{mat*1024} {self.st}")
        self.lds_signal(C_HST, vZ, vONE)
        self.stamp(3)
        a("s_branch L_wo")
        a.label("L_h0b")
        a("s_waitcnt vmcnt(4)")
        for s in range(4):
            for blk in range(4):
                r = AW + 4 * (s * 4 + blk)
                off = trA8(WQT, 4, blk, s)
                a(f"ds_read_b64_tr_b16 {vr(r,2)}, v{vTA8} offset:{off}")
                a(f"ds_read_b64_tr_b16 {vr(r+2,2)}, v{vTA8} offset:{off+512}")
        a(f"""s_and_b32 s{sTMP}, s{sJ}, 3
        s_lshl_b32 s{sTMP+1}, s{sTMP}, 8
        v_add_u32 v{vBA}, s{sTMP+1}, v{vBA}
        v_lshlrev_b32 v{vA}, 16, v{vN3}
        v_lshl_add_u32 v{vA}, v{vR}, 6, v{vA}
        v_lshl_add_u32 v{vA}, v{vG}, 4, v{vA}
        s_lshl_b32 s{sTMP}, s{sTMP}, 11
        s_lshl_b32 s{sTMP+1}, s{sKVH}, 13
        s_add_u32 s{sTMP}, s{sTMP}, s{sTMP+1}
        s_lshr_b32 s{sTMP+1}, s{sJ}, 2
        s_lshl_b32 s{sTMP+1}, s{sTMP+1}, 8
        s_add_u32 s{sTMP}, s{sTMP}, s{sTMP+1}
        s_add_u32 s{sTMP}, s{sTMP}, {Q_OFF}""")
        self.lds_wait(C_XN, 4, vZ, vT, sleep=0)
        for s in range(4):
            a(f"ds_read_b128 {vr(BW+4*s,4)}, v{vBA} offset:{XN+s*64}")
        for s in range(4):
            a(f"s_waitcnt lgkmcnt({3-s})")
            for blk in range(4):
                d = D0 + 4 * blk
                c = "0" if s == 0 else vr(d, 4)
                a(f"v_mfma_f32_16x16x32_bf16 {vr(d,4)}, {vr(AW+4*(s*4+blk),4)}, {vr(BW+4*s,4)}, {c}")
        self.sel4(16, D0, D0 + 4, D0 + 8, D0 + 12)
        a(f"s_and_b32 s{sT8}, s{sT}, 0xff\nv_mov_b32 v20, s{sT8}\ns_movk_i32 s{sT8}, 0xff")
        self.tag_f32(range(16, 20), 20, sT8, half=0x80)
        a(f"buffer_store_dwordx4 v[16:19], v{vA}, {WSR}, s{sTMP} offen {self.st}")
        self.lds_signal(C_QST, vZ, vONE)
        self.stamp(3)
        a("s_branch L_wo")
        a.label("L_h2b")
        a(f"""v_lshlrev_b32 v{vA}, 4, v0
        s_lshr_b32 s{sTMP}, s{sJ}, 3
        s_lshl_b32 s{sTMP}, s{sTMP}, 16
        s_lshl_b32 s{sTMP+1}, s{sKVH}, 13
        s_add_u32 s{sTMP}, s{sTMP}, s{sTMP+1}
        s_add_u32 s{sTMP}, s{sTMP}, {Q_OFF}
        s_add_u32 s{sTMP+1}, s{sTMP}, 4096""")
        self.lds_wait(C_QST, 1, vZ, vT, sleep=1)
        if self.qsleep: a(f"s_sleep {self.qsleep}")
        ld = "\n".join(f"buffer_load_dwordx4 {vr(16+4*(2*ks+i),4)}, v{vA}, {WSR}, s{sTMP+(ks>>1)} offen offset:{(ks&1)*2048+i*1024} {self.ld}"
                       for ks in range(4) for i in range(2))
        a(f"s_and_b32 s{sT8}, s{sT}, 0xff")
        self.glb_poll(ld, range(16, 48), sT8, 0xff, vT, early=True)
        for r in range(8):
            a(f"v_add_f32 v{16+r}, v{16+r}, v{24+r}\nv_add_f32 v{32+r}, v{32+r}, v{40+r}")
        for r in range(8):
            a(f"v_add_f32 v{16+r}, v{16+r}, v{32+r}")
        for i in range(4):
            a(f"v_cvt_pk_bf16_f32 v{24+i}, v{16+2*i}, v{17+2*i}")
        a(f"""v_lshlrev_b32 v{vA}, 3, v0
        ds_write_b64 v{vA}, v[24:25] offset:{QL}
        ds_write_b64 v{vA}, v[26:27] offset:{QL+512}""")
        self.lds_signal(C_Q, vZ, vONE)
        self.stamp(3)
        a("s_branch L_wo")
        a.label("L_h3b")
        a(f"""s_cmp_ge_u32 s{sJ}, 28
        s_cbranch_scc1 L_wo
        s_waitcnt vmcnt(4)""")
        for blk in range(8):
            off = W2T + (blk >> 1) * 256 + (blk & 1) * 32
            a(f"ds_read_b64_tr_b16 {vr(AW+4*blk,2)}, v{vTA4} offset:{off}")
            a(f"ds_read_b64_tr_b16 {vr(AW+4*blk+2,2)}, v{vTA4} offset:{off+PS4}")
        a(f"""v_lshlrev_b32 v{vA}, 4, v0
        s_lshr_b32 s{sTMP}, s{sSL}, 2
        s_lshl_b32 s{sTMP}, s{sTMP}, 13
        s_add_u32 s{sTMP}, s{sTMP}, {GU_OFF}
        s_add_u32 s{sTMP+1}, s{sTMP}, 4096""")
        self.lds_wait(C_HST, 1, vZ, vT, sleep=1)
        if self.gusleep: a(f"s_sleep {self.gusleep}")
        GB = 48
        ld = "\n".join(f"buffer_load_dwordx4 {vr(GB+8*hi+4*mat,4)}, v{vA}, {WSR}, s{sTMP+(hi>>1)} offen offset:{(hi&1)*2048+mat*1024} {self.ld}"
                       for hi in range(4) for mat in range(2))
        self.glb_poll(ld, range(GB, GB + 32), sT12, 0xfff, vT, early=True)
        for r in range(8):
            a(f"v_add_f32 v{GB+r}, v{GB+r}, v{GB+8+r}\nv_add_f32 v{GB+16+r}, v{GB+16+r}, v{GB+24+r}")
        for r in range(8):
            a(f"v_add_f32 v{GB+r}, v{GB+r}, v{GB+16+r}")
        for r in range(8):
            a(f"v_add_f32_dpp v{GB+r}, v{GB+r}, v{GB+r} row_ror:8 {DPPF}")
        for r in range(0, 8, 2): self.bf16r(GB + r, GB + r + 1, vT)
        for r in range(4): self.silu(GB + r, GB + 8 + r)
        self.bf16r(GB, GB + 1, vT); self.bf16r(GB + 2, GB + 3, vT)
        for r in range(4): a(f"v_mul_f32 v{GB+r}, v{GB+r}, v{GB+4+r}")
        HP, HO, HB_ = GB + 8, GB + 10, GB + 12
        a(f"""v_cvt_pk_bf16_f32 v{HP}, v{GB}, v{GB+1}
        v_cvt_pk_bf16_f32 v{HP+1}, v{GB+2}, v{GB+3}
        s_mov_b32 vcc_lo, 0xf0f0f0f0
        s_mov_b32 vcc_hi, 0xf0f0f0f0
        v_mov_b32_dpp v{HO}, v{HP} row_ror:4 {DPPF}
        v_mov_b32_dpp v{HO+1}, v{HP+1} row_ror:4 {DPPF}
        v_cndmask_b32 v{HB_}, v{HP}, v{HO}, vcc
        v_cndmask_b32 v{HB_+1}, v{HP+1}, v{HO+1}, vcc
        v_cndmask_b32 v{HB_+2}, v{HO}, v{HP}, vcc
        v_cndmask_b32 v{HB_+3}, v{HO+1}, v{HP+1}, vcc""")
        ZD = 96
        for blk in range(8):
            a(f"v_mfma_f32_16x16x32_bf16 {vr(ZD+4*blk,4)}, {vr(AW+4*blk,4)}, {vr(HB_,4)}, 0")
        a(f"""v_lshlrev_b32 v{vA}, 6, v{vN3}
        v_lshl_add_u32 v{vA}, v{vG}, 4, v{vA}
        v_lshl_add_u32 v{vA}, v{vR}, 8, v{vA}
        s_lshl_b32 s{sTMP}, s{sSL}, 11
        s_add_u32 s{sTMP}, s{sTMP}, {Z_OFF}""")
        for i in range(2):
            self.sel4(16 + 4 * i, ZD + 16 * i, ZD + 16 * i + 4, ZD + 16 * i + 8, ZD + 16 * i + 12)
        self.tag_f32(range(16, 24), vTG12, sM12)
        for i in range(2):
            a(f"buffer_store_dwordx4 {vr(16+4*i,4)}, v{vA}, {WSR}, s{sTMP} offen offset:{i*1024} {self.st}")
        self.lds_signal(C_ZST, vZ, vONE)
        self.stamp(3)
        a.label("L_wo")
        WA = 100
        a(f"""s_waitcnt vmcnt(0)""")
        self.lds_signal(C_WO, vZ, vONE)
        a(f"""s_lshl_b32 s{sTMP}, s{sHB}, 8
        v_add_u32 v{vTA4}, s{sTMP}, v{vTA4}""")
        self.lds_wait(C_WO, 4, vZ, vT, sleep=1)
        for blk in range(2):
            for s in range(2):
                for hf in range(2):
                    a(f"ds_read_b64_tr_b16 {vr(WA+8*blk+4*s+2*hf,2)}, v{vTA4} offset:{WOT+(8*s+hf)*PS4+blk*32}")
        self.stamp(4)
        vFA, vGATE, vXF, vOUTA = 120, 121, 122, 123
        a(f"""v_lshrrev_b32 v{vT}, 3, v0
        v_lshlrev_b32 v{vFA}, 13, v{vT}
        v_and_b32 v{vT}, 7, v0
        v_lshl_add_u32 v{vFA}, v{vT}, 4, v{vFA}
        s_lshr_b32 s{sTMP}, s{sWG}, 1
        s_lshl_b32 s{sTMP}, s{sTMP}, 8
        s_and_b32 s{sTMP+1}, s{sWG}, 1
        s_lshl_b32 s{sTMP+1}, s{sTMP+1}, 7
        s_add_u32 s{sTMP}, s{sTMP}, s{sTMP+1}
        v_add_u32 v{vFA}, s{sTMP}, v{vFA}""")
        a(f"""v_bfe_u32 v{vT}, v0, 2, 1
        s_and_b32 s{sTMP}, s{sWG}, 1
        s_lshl_b32 s{sTMP}, s{sTMP}, 1
        v_add_u32 v{vT}, s{sTMP}, v{vT}
        v_lshlrev_b32 v{vOUTA}, 10, v{vT}
        v_and_b32 v{vT}, 3, v0
        v_lshl_add_u32 v{vOUTA}, v{vT}, 3, v{vOUTA}
        v_bfe_u32 v{vT}, v0, 5, 1
        v_lshl_add_u32 v{vOUTA}, v{vT}, 1, v{vOUTA}
        v_bfe_u32 v{vT}, v0, 4, 1
        v_lshl_add_u32 v{vOUTA}, v{vT}, 2, v{vOUTA}
        s_lshr_b32 s{sTMP}, s{sWG}, 1
        s_lshl_b32 s{sTMP}, s{sTMP}, 5
        v_add_u32 v{vOUTA}, s{sTMP}, v{vOUTA}
        """)
        a(f"""s_cmp_lg_u32 s{sHB}, 2
        s_cbranch_scc1 L_tail
        s_cmp_ge_u32 s{sWG}, 64
        s_cbranch_scc1 L_tail""")
        a(f"buffer_load_ushort v{vXF}, v{vOUTA}, {R(RC)}, 0 offen")
        self.lds_wait(C_ZST, 1, vZ, vT, sleep=2)
        sI = 56
        for i in range(7):
            a(f"s_mov_b32 s{sI+i}, {Z_OFF + i*65536}")
        ld = "\n".join(f"buffer_load_dwordx4 {vr(16+4*i,4)}, v{vFA}, {WSR}, s{sI+i} offen {self.ld}" for i in range(7))
        self.glb_poll(ld, range(16, 44), sT12, 0xfff, vT, sleep=2, early=True)
        for step in (4, 2, 1):
            for i in range(step):
                if i + step < 7:
                    for r in range(4): a(f"v_add_f32 v{16+4*i+r}, v{16+4*i+r}, v{16+4*(i+step)+r}")
        self.reduce_scatter_rows(16)
        a(f"v_add_f32_dpp v16, v16, v16 row_ror:8 {DPPF}")
        a(f"v_cvt_pk_bf16_f32 v16, v16, v16\nv_and_b32 v16, 0xffff0000, v16")
        self.silu(16, 17)
        a(f"v_cvt_pk_bf16_f32 v16, v16, v16\nv_and_b32 v{vGATE}, 0xffff0000, v16")
        a(f"v_lshlrev_b32 v{vXF}, 16, v{vXF}")
        self.stamp(5)
        a.label("L_tail")
        vOA, vMLA = 14, 15
        a(f"""v_lshlrev_b32 v{vOA}, 14, v{vG}
        v_bfe_u32 v{vT}, v0, 3, 1
        v_lshl_add_u32 v{vOA}, v{vT}, 10, v{vOA}
        v_and_b32 v{vT}, 7, v0
        v_lshl_add_u32 v{vOA}, v{vT}, 4, v{vOA}
        s_lshl_b32 s{sTMP}, s{sHB}, 17
        s_lshl_b32 s{sTMP+1}, s{sKVH}, 11
        s_add_u32 s{sTMP}, s{sTMP}, s{sTMP+1}
        s_lshr_b32 s{sTMP+1}, s{sJ}, 3
        s_lshl_b32 s{sTMP+1}, s{sTMP+1}, 8
        s_add_u32 s{sTMP}, s{sTMP}, s{sTMP+1}
        s_bfe_u32 s{sTMP+1}, s{sJ}, 0x10002
        s_lshl_b32 s{sTMP+1}, s{sTMP+1}, 7
        s_add_u32 s{sTMP}, s{sTMP}, s{sTMP+1}
        s_add_u32 s{sTMP}, s{sTMP}, {O_OFF}
        s_add_u32 s{sTMP+1}, s{sTMP}, 65536
        s_lshl_b32 s{sTMP+2}, s{sHB}, 3
        s_add_u32 s{sTMP+2}, s{sTMP+2}, s{sKVH}
        s_lshl_b32 s{sTMP+2}, s{sTMP+2}, 8
        s_lshr_b32 s{sTMP+3}, s{sJ}, 3
        s_lshl_b32 s{sTMP+3}, s{sTMP+3}, 6
        s_add_u32 s{sTMP+2}, s{sTMP+2}, s{sTMP+3}
        s_add_u32 s{sTMP+2}, s{sTMP+2}, {ML_OFF}
        v_lshlrev_b32 v{vMLA}, 4, v{vG}""")
        vAW, vBR, vYA = 12 + 0, 13, 3
        a(f"""v_and_b32 v{vT}, 7, v0
        v_lshlrev_b32 v2, 4, v{vT}
        v_bfe_u32 v{vT}, v0, 3, 1
        v_lshl_add_u32 v2, v{vT}, 3, v2
        v_bfe_u32 v{vT}, v0, 5, 1
        v_lshl_add_u32 v2, v{vT}, 1, v2
        v_bfe_u32 v{vT}, v0, 4, 1
        v_lshl_add_u32 v2, v{vT}, 2, v2
        s_mul_i32 s{sTMP+3}, s{sHB}, {ALS}
        v_add_u32 v2, s{sTMP+3}, v2
        s_movk_i32 s{sTMP+3}, {ALS}
        v_mul_lo_u32 v{vBR}, v{vN3}, s{sTMP+3}
        v_lshl_add_u32 v{vBR}, v{vG}, 4, v{vBR}
        v_lshlrev_b32 v{vYA}, 6, v{vN3}
        v_lshl_add_u32 v{vYA}, v{vG}, 4, v{vYA}
        v_bfe_u32 v{vT}, v0, 2, 1
        v_lshl_add_u32 v{vYA}, v{vT}, 8, v{vYA}""")
        self.lds_wait(C_RED, 8, vZ, vT, sleep=1)
        self.stamp(6)
        self.glb_poll(f"buffer_load_dwordx4 v[16:19], v{vOA}, {WSR}, s{sTMP} offen {self.ld}\n"
                      f"buffer_load_dwordx4 v[20:23], v{vOA}, {WSR}, s{sTMP+1} offen {self.ld}\n"
                      f"buffer_load_dwordx4 v[24:27], v{vMLA}, {WSR}, s{sTMP+2} offen {self.ld}",
                      range(16, 28), sT12, 0xfff, vT)
        self.stamp(7)
        a("v_max_f32 v28, v24, v26")
        self.rows_allreduce("v_max_f32", 28, vT)
        a(f"""v_sub_f32 v24, v24, v28
        v_sub_f32 v26, v26, v28
        v_mul_f32 v24, {LOG2E}, v24
        v_mul_f32 v26, {LOG2E}, v26
        v_exp_f32 v24, v24
        v_exp_f32 v26, v26
        s_nop 0
        v_mul_f32 v25, v25, v24
        v_fmac_f32 v25, v27, v26""")
        for r in range(4): a(f"v_mul_f32 v{16+r}, v{16+r}, v24")
        for r in range(4): a(f"v_fmac_f32 v{16+r}, v{20+r}, v26")
        self.rows_allreduce("v_add_f32", 25, vT)
        self.reduce_scatter_rows(16)
        a(f"""v_rcp_f32 v25, v25
        s_nop 0
        v_mul_f32 v16, v16, v25
        v_cvt_pk_bf16_f32 v16, v16, v16
        ds_write_b16 v2, v16 offset:{AL}
        s_waitcnt lgkmcnt(0)
        s_barrier
        ds_read_b128 v[16:19], v{vBR} offset:{AL}
        ds_read_b128 v[20:23], v{vBR} offset:{AL+64}""")
        a(f"""s_lshl_b32 s{sTMP}, s{sKVH}, 5
        s_add_u32 s{sTMP}, s{sTMP}, s{sJ}
        s_lshl_b32 s{sTMP}, s{sTMP}, 11
        s_lshl_b32 s{sTMP+1}, s{sHB}, 9
        s_add_u32 s{sTMP}, s{sTMP}, s{sTMP+1}
        s_add_u32 s{sTMP}, s{sTMP}, {Y_OFF}
        s_waitcnt lgkmcnt(0)""")
        for blk in range(2):
            a(f"v_mfma_f32_16x16x32_bf16 {vr(24+4*blk,4)}, {vr(WA+8*blk,4)}, v[16:19], 0")
        for blk in range(2):
            a(f"v_mfma_f32_16x16x32_bf16 {vr(24+4*blk,4)}, {vr(WA+8*blk+4,4)}, v[20:23], {vr(24+4*blk,4)}")
        for r in range(4): a(f"v_cndmask_b32 v{24+r}, v{24+r}, v{28+r}, s[{sMB1}:{sMB1+1}]")
        self.tag_f32(range(24, 28), vTG12, sM12)
        a("s_mov_b32 exec_lo, 0x00ff00ff\ns_mov_b32 exec_hi, 0x00ff00ff")
        a(f"buffer_store_dwordx4 v[24:27], v{vYA}, {WSR}, s{sTMP} offen {self.st}")
        a("s_mov_b64 exec, -1")
        self.stamp(8)
        a(f"""s_cmp_lg_u32 s{sHB}, 2
        s_cbranch_scc1 L_hdone
        s_cmp_ge_u32 s{sWG}, 64
        s_cbranch_scc1 L_hdone""")
        for i in range(8):
            a(f"s_mov_b32 s{sI+i}, {Y_OFF + i*65536}")
        ld = "\n".join(f"buffer_load_dwordx4 {vr(32+4*i,4)}, v{vFA}, {WSR}, s{sI+i} offen {self.ld}" for i in range(8))
        self.glb_poll(ld, range(32, 64), sT12, 0xfff, vT)
        self.stamp(9)
        for step in (4, 2, 1):
            for i in range(step):
                for r in range(4): a(f"v_add_f32 v{32+4*i+r}, v{32+4*i+r}, v{32+4*(i+step)+r}")
        self.reduce_scatter_rows(32)
        a(f"v_add_f32_dpp v32, v32, v32 row_ror:8 {DPPF}")
        a(f"""v_cvt_pk_bf16_f32 v32, v32, v32
        v_and_b32 v32, 0xffff0000, v32
        v_mul_f32 v32, v32, v{vGATE}
        v_cvt_pk_bf16_f32 v32, v32, v32
        v_and_b32 v32, 0xffff0000, v32
        v_add_f32 v32, v32, v{vXF}
        v_cvt_pk_bf16_f32 v32, v32, v32""")
        srd(a, RA, sOUT, 4096)
        a(f"""s_mov_b32 exec_lo, 0x00ff00ff
        s_mov_b32 exec_hi, 0x00ff00ff
        buffer_store_short v32, v{vOUTA}, {R(RA)}, 0 offen
        s_mov_b64 exec, -1
        s_cmp_lg_u32 s{sWG}, 0
        s_cbranch_scc1 L_hdone
        v_mov_b32 v33, s{sT}
        s_mov_b64 exec, 1
        buffer_store_dword v33, v{vZ}, {WSR}, 0 offen sc1
        s_mov_b64 exec, -1""")
        a.label("L_hdone")
        self.stamp(10)
        self.dump_stamps(11)
        a.label("L_end")
        a("s_endpgm")

    def build(self):
        self.prologue()
        self.swave()
        self.helper()
        lines = hazard.fix(self.a.lines)
        txt = HEAD + f"; @launch grid=(256,1,1) block=(768,1,1) lds={LDS_SIZE}\n"
        txt += f""".amdgcn_target "amdgcn-amd-amdhsa--gfx950"
.text
.globl {NAME}
.p2align 8
.type {NAME},@function
{NAME}:
"""
        txt += "\n".join(lines) + "\n"
        txt += f""".section .rodata,"a"
.p2align 6
.amdhsa_kernel {NAME}
  .amdhsa_next_free_vgpr 168
  .amdhsa_next_free_sgpr 102
  .amdhsa_accum_offset 168
  .amdhsa_group_segment_fixed_size 0
  .amdhsa_kernarg_size 96
  .amdhsa_user_sgpr_count 2
  .amdhsa_user_sgpr_kernarg_segment_ptr 1
  .amdhsa_system_sgpr_workgroup_id_x 1
.end_amdhsa_kernel
"""
        return txt

def gen(**kw):
    return G(**kw).build()

if __name__ == "__main__":
    import argparse
    p = argparse.ArgumentParser()
    p.add_argument("-o", default="recurrent_scan__gqa_block_cached__glu_gated_swiglu__decode.s")
    p.add_argument("--prof", action="store_true")
    args = p.parse_args()
    open(args.o, "w").write(gen(prof=args.prof))
    print("wrote", args.o)
```

```python
import sys
from asmlib import Asm
import hazard

NAME = "recurrent_scan__gqa_block_cached__glu_gated_swiglu__decode_kernel"

Q_OFF, GU_OFF, Z_OFF, O_OFF, ML_OFF, Y_OFF, DBG_OFF = 0x40000, 0x80000, 0x280000, 0x100000, 0x180000, 0x200000, 0x400000
WS_SIZE = 0x800000
CNT, MT, LT, AL, ALS, QL = 0, 64, 192, 320, 144, 1024
PS8, PS4 = 1056, 1040
WQT = 2048
W1T = WQT + 16 * PS8
W3T = W1T + 8 * PS8
W2T = W3T + 8 * PS8
WOT = W2T + 8 * PS4
XN, XNS = WOT + 16 * PS4, 1088
assert XN + 4 * XNS <= 65536
RED = 65536
LDS_SIZE = 81920
C_XN, C_Q, C_M, C_RED, C_QST, C_HST, C_ZST, C_WO = [CNT + 4 * i for i in range(8)]
LOG2E = "0x3fb8aa3b"
SCALE = "0x3db504f3"

sWG, sWV = 2, 3
sX, sK, sV, sWQ, sWO, sW1, sW3, sW2, sOUT, sDBG, sWS = 4, 6, 8, 10, 12, 16, 18, 20, 22, 24, 26
sKVH, sJ, sT, sT12 = 28, 29, 30, 31
WSR = "s[32:35]"
RA, RB, RC = 36, 40, 44
sT16 = 48
sT8 = 49
sTMP = 50
sSPIN = 64
sHB = 65
sSTAMP = 70
sMB1, sMB2, sMB3 = 94, 96, 98

HEAD = """; Kernarg layout for this problem (96 bytes, ptrs only, base s[0:1]):
"""

def srd(a, base, ptr, size, off=None):
    if off is None:
        a(f"s_mov_b32 s{base}, s{ptr}\ns_mov_b32 s{base+1}, s{ptr+1}")
    else:
        a(f"s_add_u32 s{base}, s{ptr}, s{off}\ns_addc_u32 s{base+1}, s{ptr+1}, 0")
    a(f"s_mov_b32 s{base+2}, {size}\ns_mov_b32 s{base+3}, 0x00020000")

def R(b): return f"s[{b}:{b+3}]"
def vr(b, n): return f"v[{b}:{b+n-1}]"

DPPF = "row_mask:0xf bank_mask:0xf"

class G:
    def __init__(self, prof=False, kv_nt=True, w_nt=True, spin_lds=1 << 18, spin_glb=1 << 14,
                 nv1=16, kprio=1, qsleep=16, gusleep=16, ho_ld="sc1", ho_st="sc1", nopoll=0, exp=0, dbg=0):
        self.a = Asm()
        self.prof = prof or dbg
        self.dbg = dbg
        self.kv_nt = " nt" if kv_nt else ""
        self.w_nt = " nt" if w_nt else ""
        self.spin_lds = spin_lds
        self.spin_glb = spin_glb
        self.nstamp = 0
        self.nv1 = nv1
        self.exp = exp
        self.nopoll = nopoll
        self.kprio = kprio
        self.qsleep = qsleep
        self.gusleep = gusleep
        self.ld = ho_ld
        self.st = ho_st

    def stamp(self, i):
        if self.prof:
            self.a(f"s_memrealtime s[{sSTAMP+2*i}:{sSTAMP+2*i+1}]")

    def dump_dbg(self, slots, hslot=None, vt=4):
        a = self.a
        a("s_waitcnt lgkmcnt(0)")
        srd(a, RA, sDBG, 256)
        a(f"v_mov_b32 v{vt}, 0\nv_mov_b32 v{vt+1}, 0")
        a(f"s_not_b32 s{sTMP}, s{sSTAMP}")
        a(f"v_writelane_b32 v{vt}, s{sTMP}, 0")
        for i, (st, sl) in enumerate(slots):
            a(f"v_writelane_b32 v{vt}, s{sSTAMP+2*st}, {i+1}")
            if sl is None:
                a(f"s_lshl_b32 s{sTMP}, s{sHB}, 2\ns_add_u32 s{sTMP}, s{sTMP}, {4*hslot}")
            else:
                a(f"s_mov_b32 s{sTMP}, {4*sl}")
            a(f"v_writelane_b32 v{vt+1}, s{sTMP}, {i+1}")
        a(f"s_mov_b64 exec, {(1 << (len(slots)+1)) - 1}")
        a(f"buffer_atomic_umax v{vt}, v{vt+1}, {R(RA)}, 0 offen sc1")
        a("s_mov_b64 exec, -1")

    def dump_stamps(self, n, vt=4):
        if not self.prof: return
        a = self.a
        if self.dbg:
            if n == 9: self.dump_dbg([(0,1),(1,2),(3,3),(7,4),(8,5)])
            else: self.dump_dbg([(1,6),(2,7),(3,None),(7,12),(8,13),(9,14),(10,15)], hslot=8)
            return
        a("s_waitcnt lgkmcnt(0)")
        a(f"v_mov_b32 v{vt}, 0")
        for i in range(n):
            a(f"v_writelane_b32 v{vt}, s{sSTAMP+2*i}, {i}")
        a(f"""s_mul_i32 s{sTMP}, s{sWG}, 12
        s_add_u32 s{sTMP}, s{sTMP}, s{sWV}
        s_lshl_b32 s{sTMP}, s{sTMP}, 6
        s_add_u32 s{sTMP}, s{sTMP}, {DBG_OFF}
        v_mbcnt_lo_u32_b32 v{vt+1}, -1, 0
        v_mbcnt_hi_u32_b32 v{vt+1}, -1, v{vt+1}
        v_lshlrev_b32 v{vt+1}, 2, v{vt+1}
        v_add_u32 v{vt+1}, s{sTMP}, v{vt+1}
        s_mov_b64 exec, 0xffff
        buffer_store_dword v{vt}, v{vt+1}, {WSR}, 0 offen
        s_mov_b64 exec, -1""")

    def rows_allreduce(self, op, x, t):
        a = self.a
        a(f"""v_mov_b32 v{t}, v{x}
        v_permlane32_swap_b32 v{x}, v{t}
        {op} v{x}, v{x}, v{t}
        v_mov_b32 v{t}, v{x}
        v_permlane16_swap_b32 v{x}, v{t}
        {op} v{x}, v{x}, v{t}""")

    def quad_allreduce(self, op, x):
        a = self.a
        a(f"{op}_dpp v{x}, v{x}, v{x} quad_perm:[1,0,3,2] {DPPF}")
        a(f"{op}_dpp v{x}, v{x}, v{x} quad_perm:[2,3,0,1] {DPPF}")

    def wave_allreduce_add(self, x, t):
        a = self.a
        self.quad_allreduce("v_add_f32", x)
        a(f"v_add_f32_dpp v{x}, v{x}, v{x} row_half_mirror {DPPF}")
        a(f"v_add_f32_dpp v{x}, v{x}, v{x} row_mirror {DPPF}")
        self.rows_allreduce("v_add_f32", x, t)

    def lds_signal(self, cnt, vzero, vone):
        self.a(f"""s_mov_b64 exec, 1
        ds_add_u32 v{vzero}, v{vone} offset:{cnt}
        s_mov_b64 exec, -1""")

    def lds_wait(self, cnt, val, vzero, vt, sleep=1, extra=None, stage=0):
        a = self.a
        L = a.newlabel("L_spin"); D = a.newlabel("L_spun")
        a(f"s_mov_b32 s{sSPIN}, {self.spin_lds}")
        a.label(L)
        a(f"ds_read_b32 v{vt}, v{vzero} offset:{cnt}")
        if extra: a(extra)
        a(f"""s_waitcnt lgkmcnt(0)
        v_cmp_le_u32 vcc, {val}, v{vt}
        s_cbranch_vccnz {D}""")
        if sleep: a(f"s_sleep {sleep}")
        a(f"""s_sub_u32 s{sSPIN}, s{sSPIN}, 1
        s_cmp_lg_u32 s{sSPIN}, 0
        s_cbranch_scc1 {L}""")
        a.label(D)

    def glb_poll(self, loads, regs, tagv, maskbits, vt, sleep=0, early=False):
        a = self.a
        if early and self.nopoll == 1: return
        if early and self.nopoll == 2:
            a(loads); a("s_waitcnt vmcnt(0)"); return
        L = a.newlabel("L_poll"); D = a.newlabel("L_polled")
        a(f"s_mov_b32 s{sSPIN}, {self.spin_glb}")
        a.label(L)
        a(loads)
        a("s_waitcnt vmcnt(0)")
        for r in regs:
            a(f"v_xor_b32 v{r}, s{tagv}, v{r}")
        rs = list(regs)
        a(f"v_or3_b32 v{vt}, v{rs[0]}, v{rs[1]}, v{rs[2]}")
        i = 3
        while i + 1 < len(rs):
            a(f"v_or3_b32 v{vt}, v{vt}, v{rs[i]}, v{rs[i+1]}"); i += 2
        if i < len(rs):
            a(f"v_or_b32 v{vt}, v{vt}, v{rs[i]}")
        a(f"""v_and_b32 v{vt}, {hex(maskbits)}, v{vt}
        v_cmp_ne_u32 vcc, 0, v{vt}
        s_cbranch_vccz {D}""")
        if sleep: a(f"s_sleep {sleep}")
        a(f"""s_sub_u32 s{sSPIN}, s{sSPIN}, 1
        s_cmp_lg_u32 s{sSPIN}, 0
        s_cbranch_scc1 {L}""")
        a.label(D)

    def tag_f32(self, regs, vtag, smask, half=0x800):
        a = self.a
        for r in regs:
            a(f"v_add_u32 v{r}, {hex(half)}, v{r}")
        for r in regs:
            a(f"v_bfi_b32 v{r}, s{smask}, v{vtag}, v{r}")

    def reduce_scatter_rows(self, r0):
        a = self.a
        a(f"""v_permlane32_swap_b32 v{r0}, v{r0+1}
        v_permlane32_swap_b32 v{r0+2}, v{r0+3}
        v_add_f32 v{r0}, v{r0}, v{r0+1}
        v_add_f32 v{r0+2}, v{r0+2}, v{r0+3}
        v_permlane16_swap_b32 v{r0}, v{r0+2}
        v_add_f32 v{r0}, v{r0}, v{r0+2}""")

    def silu(self, x, t):
        a = self.a
        a(f"""v_mul_f32 v{t}, 0xbfb8aa3b, v{x}
        v_exp_f32 v{t}, v{t}
        v_add_f32 v{t}, 1.0, v{t}
        v_rcp_f32 v{t}, v{t}
        v_mul_f32 v{x}, v{x}, v{t}""")

    def bf16r(self, x, y, t):
        a = self.a
        a(f"""v_cvt_pk_bf16_f32 v{t}, v{x}, v{y}
        v_lshlrev_b32 v{x}, 16, v{t}
        v_and_b32 v{y}, 0xffff0000, v{t}""")

    def prologue(self):
        a = self.a
        a(f"""s_cmp_ge_u32 s{sWG}, 256
        s_cbranch_scc1 L_end
        s_load_dwordx16 s[4:19], s[0:1], 0
        s_load_dwordx8 s[20:27], s[0:1], 64
        v_lshrrev_b32 v1, 6, v0
        v_and_b32 v0, 63, v0
        v_readfirstlane_b32 s{sWV}, v1
        s_and_b32 s{sKVH}, s{sWG}, 7
        s_lshr_b32 s{sJ}, s{sWG}, 3""")
        if self.dbg:
            for i in range(1, 11): a(f"s_mov_b32 s{sSTAMP+2*i}, 0")
        self.stamp(0)
        a(f"""s_cmp_lg_u32 s{sWV}, 0
        s_cbranch_scc1 L_noclr
        v_lshlrev_b32 v1, 2, v0
        v_mov_b32 v2, 0
        s_mov_b64 exec, 0xffff
        ds_write_b32 v1, v2 offset:{CNT}
        s_mov_b64 exec, -1""")
        a.label("L_noclr")
        a(f"""s_cmp_ge_u32 s{sWV}, 8
        s_cbranch_scc1 L_helper""")

    def tags(self):
        a = self.a
        a(f"""s_add_u32 s{sT}, s{sT}, 1
        s_and_b32 s{sT12}, s{sT}, 0xfff
        s_and_b32 s{sT16}, s{sT}, 0xffff""")

    def swave(self):
        a = self.a
        vKO, vVO, vM0, vM1, vZ, vONE, vT, vT2 = 1, 2, 3, 4, 5, 6, 7, 144
        KB, VB, QB, XB, ACC = 8, 72, 136, 140, 152
        vM, vL, vAD = 145, 146, 147
        sO1, sO2, sO3 = 52, 53, 54
        sM1, sM2, sM3 = 56, 58, 60
        a(f"""v_and_b32 v{vT}, 15, v0
        v_lshrrev_b32 v{vT}, 2, v{vT}
        v_lshlrev_b32 v{vKO}, 8, v{vT}
        v_lshrrev_b32 v{vT}, 4, v0
        v_lshl_add_u32 v{vKO}, v{vT}, 6, v{vKO}
        v_and_b32 v{vT}, 3, v0
        v_lshl_add_u32 v{vKO}, v{vT}, 4, v{vKO}
        v_lshlrev_b32 v{vVO}, 4, v0
        v_mov_b32 v{vZ}, 0
        v_mov_b32 v{vONE}, 1
        s_lshr_b32 s{sTMP}, s{sJ}, 3
        s_lshl_b32 s{sTMP}, s{sTMP}, 3
        s_add_u32 s{sTMP}, s{sTMP}, s{sKVH}
        s_lshl_b32 s{sTMP}, s{sTMP}, 20
        s_and_b32 s{sTMP+1}, s{sJ}, 7
        s_lshl_b32 s{sTMP+1}, s{sTMP+1}, 17
        s_add_u32 s{sTMP}, s{sTMP}, s{sTMP+1}
        s_lshl_b32 s{sTMP+1}, s{sWV}, 14
        s_add_u32 s{sTMP}, s{sTMP}, s{sTMP+1}
        s_mov_b32 s{sO1}, 4096
        s_mov_b32 s{sO2}, 8192
        s_mov_b32 s{sO3}, 12288""")
        a("s_waitcnt lgkmcnt(0)\ns_barrier")
        srd(a, RA, sK, 16384, sTMP)
        srd(a, RB, sV, 16384, sTMP)
        if self.kprio: a(f"s_setprio {self.kprio}")
        so = ["0", f"s{sO1}", f"s{sO2}", f"s{sO3}"]
        for i in range(16):
            a(f"buffer_load_dwordx4 {vr(KB+4*i,4)}, v{vKO}, {R(RA)}, {so[i//4]} offen offset:{(i%4)*1024}{self.kv_nt}")
            if i == 0:
                srd(a, 32, sWS, WS_SIZE)
                a(f"s_load_dword s{sT}, s[{sWS}:{sWS+1}], 0")
        if self.kprio: a("s_setprio 0")
        for i in range(self.nv1):
            a(f"buffer_load_dwordx4 {vr(VB+4*i,4)}, v{vVO}, {R(RB)}, {so[i//4]} offen offset:{(i%4)*1024}{self.kv_nt}")
        self.stamp(1)
        if self.exp:
            a("s_waitcnt vmcnt(0)")
            for i in range(2, 9): self.stamp(i)
            a("s_branch L_sdone")
        a(f"""v_and_b32 v{vT}, 3, v0
        v_mov_b32 v{vT2}, 0xffff
        s_mov_b32 s{sM1}, 0x22222222
        s_mov_b32 s{sM1+1}, 0x22222222
        s_mov_b32 s{sM2}, 0x44444444
        s_mov_b32 s{sM2+1}, 0x44444444
        s_mov_b32 s{sM3}, 0x88888888
        s_mov_b32 s{sM3+1}, 0x88888888
        v_cmp_eq_u32 vcc, 0, v{vT}
        v_mov_b32 v{vM1}, 0xffff0000
        v_cndmask_b32 v{vM0}, 0, v{vT2}, vcc
        v_cndmask_b32 v{vM0}, v{vM0}, v{vM1}, s[{sM1}:{sM1+1}]
        v_cndmask_b32 v{vT}, 0, v{vT2}, s[{sM2}:{sM2+1}]
        v_cndmask_b32 v{vM1}, v{vT}, v{vM1}, s[{sM3}:{sM3+1}]""")
        a(f"""v_lshrrev_b32 v{vT}, 2, v0
        v_and_b32 v{vT}, 3, v{vT}
        v_lshlrev_b32 v{vAD}, 8, v{vT}
        v_lshlrev_b32 v{vT2}, 5, v{vT}
        v_lshrrev_b32 v{vT}, 4, v0
        v_lshl_add_u32 v{vAD}, v{vT}, 6, v{vAD}
        v_and_b32 v{vT}, 3, v0
        v_lshl_add_u32 v{vAD}, v{vT}, 4, v{vAD}""")
        a("s_waitcnt lgkmcnt(0)")
        self.tags()
        a(f"s_waitcnt vmcnt({self.nv1})")
        self.stamp(2)
        self.lds_wait(C_Q, 1, vZ, vT, sleep=1, extra=f"ds_read_b128 {vr(QB,4)}, v{vAD} offset:{QL}")
        self.stamp(3)
        for i in range(16):
            k = KB + 4 * i
            a(f"v_mfma_f32_16x16x32_bf16 {vr(k,4)}, {vr(k,4)}, {vr(QB,4)}, 0")
        for u in range(4):
            for t in range(4):
                k = KB + 4 * (4 * u + t)
                a(f"v_add_f32_dpp v{k+t}, v{k+(t^1)}, v{k+t} quad_perm:[1,0,3,2] {DPPF}")
                a(f"v_add_f32_dpp v{k+(t^2)}, v{k+(t^3)}, v{k+(t^2)} quad_perm:[1,0,3,2] {DPPF}")
            for t in range(4):
                k = KB + 4 * (4 * u + t)
                a(f"v_add_f32_dpp v{k+t}, v{k+(t^2)}, v{k+t} quad_perm:[2,3,0,1] {DPPF}")
            k0 = KB + 16 * u
            a(f"v_cndmask_b32 v{XB+u}, v{k0}, v{k0+4+1}, s[{sM1}:{sM1+1}]")
            a(f"v_cndmask_b32 v{XB+u}, v{XB+u}, v{k0+8+2}, s[{sM2}:{sM2+1}]")
            a(f"v_cndmask_b32 v{XB+u}, v{XB+u}, v{k0+12+3}, s[{sM3}:{sM3+1}]")
        self.bf16r(XB, XB + 1, vT); self.bf16r(XB + 2, XB + 3, vM)
        for u in range(4):
            a(f"v_mul_f32 v{XB+u}, {SCALE}, v{XB+u}")
        self.bf16r(XB, XB + 1, vT); self.bf16r(XB + 2, XB + 3, vM)
        a(f"""v_max3_f32 v{vM}, v{XB}, v{XB+1}, v{XB+2}
        v_max_f32 v{vM}, v{vM}, v{XB+3}""")
        self.quad_allreduce("v_max_f32", vM)
        self.rows_allreduce("v_max_f32", vM, vT)
        a(f"""s_lshl_b32 s{sTMP}, s{sWV}, 2
        v_add_u32 v{vAD}, s{sTMP}, v{vT2}
        ds_write_b32 v{vAD}, v{vM} offset:{MT}""")
        self.lds_signal(C_M, vZ, vONE)
        self.stamp(4)
        for i in range(self.nv1, 16):
            a(f"buffer_load_dwordx4 {vr(VB+4*i,4)}, v{vVO}, {R(RB)}, {so[i//4]} offen offset:{(i%4)*1024}{self.kv_nt}")
        self.stamp(5)
        tb = KB + 40
        self.lds_wait(C_M, 8, vZ, vT, sleep=1,
                      extra=f"ds_read_b128 {vr(tb,4)}, v{vT2} offset:{MT}\nds_read_b128 {vr(tb+4,4)}, v{vT2} offset:{MT+16}")
        a(f"""v_max3_f32 v{vM}, v{tb}, v{tb+1}, v{tb+2}
        v_max3_f32 v{vM}, v{vM}, v{tb+3}, v{tb+4}
        v_max3_f32 v{vM}, v{vM}, v{tb+5}, v{tb+6}
        v_max_f32 v{vM}, v{vM}, v{tb+7}""")
        for u in range(4): a(f"v_sub_f32 v{XB+u}, v{XB+u}, v{vM}")
        for u in range(4): a(f"v_mul_f32 v{XB+u}, {LOG2E}, v{XB+u}")
        for u in range(4): a(f"v_exp_f32 v{XB+u}, v{XB+u}")
        a(f"""v_add_f32 v{vL}, v{XB}, v{XB+1}
        v_add_f32 v{vT}, v{XB+2}, v{XB+3}
        v_add_f32 v{vL}, v{vL}, v{vT}""")
        for u in range(4): a(f"v_cvt_pk_bf16_f32 v{XB+u}, v{XB+u}, v{XB+u}")
        self.quad_allreduce("v_add_f32", vL)
        for i in range(16):
            u, t = i // 4, i % 4
            a(f"v_and_b32_dpp v{KB+2*i}, v{XB+u}, v{vM0} quad_perm:[{t},{t},{t},{t}] {DPPF}")
            a(f"v_and_b32_dpp v{KB+2*i+1}, v{XB+u}, v{vM1} quad_perm:[{t},{t},{t},{t}] {DPPF}")
        self.rows_allreduce("v_add_f32", vL, vT)
        a(f"ds_write_b32 v{vAD}, v{vL} offset:{LT}")
        self.stamp(6)
        for i in range(16):
            a(f"s_waitcnt vmcnt({15-i})")
            s = (i & 1) * 8
            for h in range(2):
                d = ACC + s + 4 * h
                c = "0" if i < 2 else vr(d, 4)
                a(f"v_mfma_f32_16x16x16_bf16 {vr(d,4)}, {vr(KB+2*i,2)}, {vr(VB+4*i+2*h,2)}, {c}")
        self.stamp(7)
        a(f"""v_lshlrev_b32 v{vAD}, 4, v0
        s_lshl_b32 s{sTMP}, s{sWV}, 11
        s_add_u32 s{sTMP}, s{sTMP}, {RED}
        v_add_u32 v{vT}, s{sTMP}, v{vAD}""")
        for r in range(8):
            a(f"v_add_f32 v{ACC+r}, v{ACC+r}, v{ACC+8+r}")
        a(f"""ds_write_b128 v{vT}, {vr(ACC,4)}
        ds_write_b128 v{vT}, {vr(ACC+4,4)} offset:1024
        s_mov_b64 exec, 1
        ds_add_rtn_u32 v{vT}, v{vZ}, v{vONE} offset:{C_RED}
        s_mov_b64 exec, -1
        s_waitcnt lgkmcnt(0)
        v_readfirstlane_b32 s{sTMP}, v{vT}
        s_cmp_lg_u32 s{sTMP}, 7
        s_cbranch_scc1 L_sdone""")
        a(f"v_add_u32 v{vAD}, {RED}, v{vAD}")
        for w in range(8):
            for j in range(2):
                a(f"ds_read_b128 {vr(KB+8*w+4*j,4)}, v{vAD} offset:{w*2048+j*1024}")
        a(f"ds_read_b128 {vr(VB,4)}, v{vT2} offset:{LT}\nds_read_b128 {vr(VB+4,4)}, v{vT2} offset:{LT+16}")
        vOA, vMLA, vTG = 136, 137, 138
        a(f"""s_lshl_b32 s{sTMP}, s{sWG}, 11
        s_add_u32 s{sTMP}, s{sTMP}, {O_OFF}
        v_lshlrev_b32 v{vOA}, 4, v0
        v_add_u32 v{vOA}, s{sTMP}, v{vOA}
        s_lshr_b32 s{sTMP}, s{sJ}, 3
        s_lshl_b32 s{sTMP}, s{sTMP}, 3
        s_add_u32 s{sTMP}, s{sTMP}, s{sKVH}
        s_lshl_b32 s{sTMP}, s{sTMP}, 8
        s_and_b32 s{sTMP+1}, s{sJ}, 3
        s_lshl_b32 s{sTMP+1}, s{sTMP+1}, 4
        s_add_u32 s{sTMP}, s{sTMP}, s{sTMP+1}
        s_bfe_u32 s{sTMP+1}, s{sJ}, 0x10002
        s_lshl_b32 s{sTMP+1}, s{sTMP+1}, 3
        s_add_u32 s{sTMP}, s{sTMP}, s{sTMP+1}
        s_add_u32 s{sTMP}, s{sTMP}, {ML_OFF}
        v_lshl_add_u32 v{vMLA}, v{vT2}, 1, s{sTMP}
        v_mov_b32 v{vTG}, s{sT12}
        s_mov_b32 s{sTMP+2}, 0xfff
        s_waitcnt lgkmcnt(0)""")
        for step in (4, 2, 1):
            for w in range(0, step):
                for r in range(8):
                    a(f"v_add_f32 v{KB+8*w+r}, v{KB+8*w+r}, v{KB+8*(w+step)+r}")
        self.tag_f32(range(KB, KB + 8), vTG, sTMP + 2)
        a(f"buffer_store_dwordx4 {vr(KB,4)}, v{vOA}, {WSR}, 0 offen {self.st}")
        a(f"buffer_store_dwordx4 {vr(KB+4,4)}, v{vOA}, {WSR}, 0 offen offset:1024 {self.st}")
        a(f"""v_add_f32 v{VB}, v{VB}, v{VB+1}
        v_add_f32 v{VB+2}, v{VB+2}, v{VB+3}
        v_add_f32 v{VB+4}, v{VB+4}, v{VB+5}
        v_add_f32 v{VB+6}, v{VB+6}, v{VB+7}
        v_add_f32 v{VB}, v{VB}, v{VB+2}
        v_add_f32 v{VB+4}, v{VB+4}, v{VB+6}
        v_add_f32 v{VB+1}, v{VB}, v{VB+4}
        v_or_b32 v{VB}, v{vM}, v{vTG}""")
        self.tag_f32([VB + 1], vTG, sTMP + 2)
        a(f"""s_mov_b64 exec, 0x1111
        buffer_store_dwordx2 {vr(VB,2)}, v{vMLA}, {WSR}, 0 offen {self.st}
        s_mov_b64 exec, -1""")
        self.stamp(8)
        a.label("L_sdone")
        self.dump_stamps(9)
        a("s_endpgm")

    def dma(self, n, srdb, voff, soff_reg, soff_step, lds_base, lds_step=1024, flags=""):
        a = self.a
        if self.exp == 2: return
        for i in range(n):
            a(f"s_mov_b32 m0, {lds_base + i*lds_step}" if isinstance(lds_base, int) else
              f"s_add_u32 m0, s{lds_base[0]}, {lds_base[1] + i*lds_step}")
            if i > 0:
                a(f"s_add_u32 s{soff_reg}, s{soff_reg}, {soff_step}")
            a(f"buffer_load_dwordx4 v{voff}, {R(srdb)}, s{soff_reg} offen{flags} lds")

    def sel4(self, dst, d0, d1, d2, d3):
        a = self.a
        for r in range(4): a(f"v_cndmask_b32 v{dst+r}, v{d0+r}, v{d1+r}, s[{sMB1}:{sMB1+1}]")
        for r in range(4): a(f"v_cndmask_b32 v{dst+r}, v{dst+r}, v{d2+r}, s[{sMB2}:{sMB2+1}]")
        for r in range(4): a(f"v_cndmask_b32 v{dst+r}, v{dst+r}, v{d3+r}, s[{sMB3}:{sMB3+1}]")

    def helper(self):
        a = self.a
        vZ, vONE, vT, vA, vD8, vD4 = 5, 6, 7, 1, 2, 3
        a.label("L_helper")
        sSL = sTMP + 4
        a(f"""s_setprio 3
        s_sub_u32 s{sHB}, s{sWV}, 8
        v_mov_b32 v{vZ}, 0
        v_mov_b32 v{vONE}, 1
        v_lshlrev_b32 v{vA}, 4, v0
        s_lshl_b32 s{sTMP}, s{sHB}, 10
        v_add_u32 v{vA}, s{sTMP}, v{vA}
        s_mul_i32 s{sSL}, s{sKVH}, 28
        s_add_u32 s{sSL}, s{sSL}, s{sJ}
        v_bfe_u32 v13, v0, 2, 2
        v_and_b32 v14, 3, v0
        v_lshlrev_b32 v14, 4, v14
        v_lshrrev_b32 v{vT}, 5, v0
        v_lshl_add_u32 v{vD8}, v{vT}, 2, v13
        v_bfe_u32 v{vT}, v0, 4, 1
        v_lshl_add_u32 v12, v{vT}, 6, v14
        v_lshrrev_b32 v{vT}, 4, v0
        v_lshl_add_u32 v{vD4}, v{vT}, 6, v14
        v_lshl_add_u32 v{vD4}, v13, 10, v{vD4}
        s_waitcnt lgkmcnt(0)""")
        srd(a, RC, sX, 4096)
        a(f"buffer_load_dwordx4 v[8:11], v{vA}, {R(RC)}, 0 offen")
        srd(a, 32, sWS, WS_SIZE)
        a(f"s_load_dword s{sT}, s[{sWS}:{sWS+1}], 0")
        def wo_dma():
            srd(a, RB, sWO, 4096 * 1024)
            a(f"""s_lshl_b32 s{sTMP}, s{sKVH}, 19
            s_lshr_b32 s{sTMP+1}, s{sJ}, 2
            s_lshl_b32 s{sTMP+1}, s{sTMP+1}, 16
            s_add_u32 s{sTMP}, s{sTMP}, s{sTMP+1}
            s_and_b32 s{sTMP+1}, s{sJ}, 3
            s_lshl_b32 s{sTMP+1}, s{sTMP+1}, 8
            s_add_u32 s{sTMP}, s{sTMP}, s{sTMP+1}
            s_lshl_b32 s{sTMP+1}, s{sHB}, 14
            s_add_u32 s{sTMP}, s{sTMP}, s{sTMP+1}
            s_mul_i32 s{sTMP+2}, s{sHB}, {4*PS4}""")
            self.dma(4, RB, vD4, sTMP, 4096, (sTMP + 2, WOT), lds_step=PS4, flags=self.w_nt)
        a(f"""s_cmp_eq_u32 s{sHB}, 0
        s_cbranch_scc1 L_h0a
        s_cmp_eq_u32 s{sHB}, 2
        s_cbranch_scc1 L_h2a
        s_cmp_ge_u32 s{sJ}, 28
        s_cbranch_scc1 L_h2a
        s_cmp_eq_u32 s{sHB}, 1
        s_cbranch_scc1 L_h1a""")
        srd(a, RA, sW2, 1792 * 1024)
        a(f"""s_lshr_b32 s{sTMP}, s{sSL}, 2
        s_lshl_b32 s{sTMP}, s{sTMP}, 15
        s_and_b32 s{sTMP+1}, s{sSL}, 3
        s_lshl_b32 s{sTMP+1}, s{sTMP+1}, 8
        s_add_u32 s{sTMP}, s{sTMP}, s{sTMP+1}""")
        self.dma(8, RA, vD4, sTMP, 4096, W2T, lds_step=PS4, flags=self.w_nt)
        wo_dma()
        a("s_barrier\ns_waitcnt vmcnt(12)\ns_branch L_ln")
        a.label("L_h1a")
        srd(a, RA, sW1, 512 * 3584)
        srd(a, RB, sW3, 512 * 3584)
        a(f"""s_movk_i32 s{sTMP+1}, 3584
        v_mul_lo_u32 v{vA}, v{vD8}, s{sTMP+1}
        v_add_u32 v{vA}, v12, v{vA}
        s_and_b32 s{sTMP}, s{sSL}, 7
        s_mul_i32 s{sTMP}, s{sTMP}, {64*3584}
        s_lshr_b32 s{sTMP+1}, s{sSL}, 3
        s_lshl_b32 s{sTMP+1}, s{sTMP+1}, 7
        s_add_u32 s{sTMP}, s{sTMP}, s{sTMP+1}
        s_mov_b32 s{sTMP+3}, s{sTMP}""")
        self.dma(8, RA, vA, sTMP, 8 * 3584, W1T, lds_step=PS8, flags=self.w_nt)
        self.dma(8, RB, vA, sTMP + 3, 8 * 3584, W3T, lds_step=PS8, flags=self.w_nt)
        wo_dma()
        a("s_barrier\ns_waitcnt vmcnt(20)\ns_branch L_ln")
        a.label("L_h0a")
        srd(a, RA, sWQ, 512 * 8192)
        a(f"""v_lshl_add_u32 v{vA}, v{vD8}, 13, v12
        s_and_b32 s{sTMP}, s{sJ}, 3
        s_lshl_b32 s{sTMP}, s{sTMP}, 20
        s_lshl_b32 s{sTMP+1}, s{sKVH}, 10
        s_add_u32 s{sTMP}, s{sTMP}, s{sTMP+1}
        s_lshr_b32 s{sTMP+1}, s{sJ}, 2
        s_lshl_b32 s{sTMP+1}, s{sTMP+1}, 7
        s_add_u32 s{sTMP}, s{sTMP}, s{sTMP+1}""")
        self.dma(16, RA, vA, sTMP, 8 * 8192, WQT, lds_step=PS8, flags=self.w_nt)
        wo_dma()
        a("s_barrier\ns_waitcnt vmcnt(20)\ns_branch L_ln")
        a.label("L_h2a")
        wo_dma()
        a("s_barrier\ns_waitcnt vmcnt(4)")
        a.label("L_ln")
        self.stamp(1)
        if self.exp:
            a("s_waitcnt vmcnt(0)")
            for i in range(2, 11): self.stamp(i)
            a("s_branch L_hdone")
        X = 12
        for i in range(4):
            a(f"v_lshlrev_b32 v{X+2*i}, 16, v{8+i}\nv_and_b32 v{X+2*i+1}, 0xffff0000, v{8+i}")
        S, S2 = 20, 21
        a(f"""v_add_f32 v{S}, v{X}, v{X+1}
        v_add_f32 v{S2}, v{X+2}, v{X+3}
        v_add_f32 v22, v{X+4}, v{X+5}
        v_add_f32 v23, v{X+6}, v{X+7}
        v_add_f32 v{S}, v{S}, v{S2}
        v_add_f32 v22, v22, v23
        v_add_f32 v{S}, v{S}, v22""")
        self.wave_allreduce_add(S, vT)
        a(f"v_mul_f32 v{S}, 0x3b000000, v{S}")
        for i in range(8): a(f"v_sub_f32 v{24+i}, v{X+i}, v{S}")
        a(f"v_mul_f32 v{S2}, v24, v24\nv_mul_f32 v22, v25, v25")
        for i in range(2, 8, 2):
            a(f"v_fmac_f32 v{S2}, v{24+i}, v{24+i}\nv_fmac_f32 v22, v{25+i}, v{25+i}")
        a(f"v_add_f32 v{S2}, v{S2}, v22")
        self.wave_allreduce_add(S2, vT)
        a(f"v_mul_f32 v{S2}, 0x3b000000, v{S2}")
        self.bf16r(S, S2, vT)
        a(f"v_add_f32 v{S2}, 0x3727c5ac, v{S2}")
        a(f"v_cvt_pk_bf16_f32 v{S2}, v{S2}, v{S2}\nv_and_b32 v{S2}, 0xffff0000, v{S2}")
        a(f"v_sqrt_f32 v{S2}, v{S2}")
        a(f"v_cvt_pk_bf16_f32 v{S2}, v{S2}, v{S2}\nv_and_b32 v{S2}, 0xffff0000, v{S2}")
        a(f"v_rcp_f32 v22, v{S2}")
        for i in range(8): a(f"v_sub_f32 v{X+i}, v{X+i}, v{S}")
        for i in range(0, 8, 2): self.bf16r(X + i, X + i + 1, vT)
        for i in range(8): a(f"v_mul_f32 v{24+i}, v{X+i}, v22")
        for i in range(8): a(f"v_fma_f32 v{X+i}, -v{24+i}, v{S2}, v{X+i}")
        for i in range(8): a(f"v_fmac_f32 v{24+i}, v{X+i}, v22")
        for i in range(4): a(f"v_cvt_pk_bf16_f32 v{8+i}, v{24+2*i}, v{25+2*i}")
        a(f"""s_mul_i32 s{sTMP}, s{sHB}, {XNS}
        v_lshlrev_b32 v{vA}, 4, v0
        v_add_u32 v{vA}, s{sTMP}, v{vA}
        ds_write_b128 v{vA}, v[8:11] offset:{XN}""")
        self.lds_signal(C_XN, vZ, vONE)
        a("s_waitcnt lgkmcnt(0)")
        self.tags()
        self.stamp(2)
        vN3, vG, vR = 8, 9, 10
        vTG12, sM12 = 4, 66
        vTA8, vTA4, vBA = 12, 13, 14
        a(f"""v_and_b32 v{vN3}, 3, v0
        v_lshrrev_b32 v{vG}, 4, v0
        v_bfe_u32 v{vR}, v0, 2, 2
        v_mov_b32 v{vTG12}, s{sT12}
        s_mov_b32 s{sM12}, 0xfff
        s_mov_b32 s{sMB1}, 0x00f000f0
        s_mov_b32 s{sMB1+1}, 0x00f000f0
        s_mov_b32 s{sMB2}, 0x0f000f00
        s_mov_b32 s{sMB2+1}, 0x0f000f00
        s_mov_b32 s{sMB3}, 0xf000f000
        s_mov_b32 s{sMB3+1}, 0xf000f000
        v_lshlrev_b32 v{vT}, 3, v{vN3}
        v_lshl_add_u32 v{vT}, v{vR}, 6, v{vT}
        s_movk_i32 s{sTMP}, {PS8}
        v_mad_u32_u24 v{vTA8}, v{vG}, s{sTMP}, v{vT}
        s_movk_i32 s{sTMP}, {2*PS4}
        v_mad_u32_u24 v{vTA4}, v{vG}, s{sTMP}, v{vT}
        s_movk_i32 s{sTMP}, {XNS}
        v_mul_u32_u24 v{vBA}, s{sTMP}, v{vN3}
        v_lshl_add_u32 v{vBA}, v{vG}, 4, v{vBA}""")
        a(f"""s_cmp_eq_u32 s{sHB}, 2
        s_cbranch_scc1 L_h2b
        s_cmp_eq_u32 s{sHB}, 3
        s_cbranch_scc1 L_h3b
        s_cmp_eq_u32 s{sHB}, 0
        s_cbranch_scc1 L_h0b
        s_cmp_ge_u32 s{sJ}, 28
        s_cbranch_scc1 L_wo""")
        AW, BW, D0 = 16, 80, 96
        def trA8(base, nks, blk, s):
            return base + 4 * s * PS8 + (blk >> 1) * 256 + (blk & 1) * 32
        a("s_waitcnt vmcnt(4)")
        for mat in range(2):
            for s in range(2):
                for blk in range(4):
                    r = AW + 4 * (mat * 8 + s * 4 + blk)
                    off = trA8(W3T if mat else W1T, 2, blk, s)
                    a(f"ds_read_b64_tr_b16 {vr(r,2)}, v{vTA8} offset:{off}")
                    a(f"ds_read_b64_tr_b16 {vr(r+2,2)}, v{vTA8} offset:{off+512}")
        a(f"""s_and_b32 s{sTMP}, s{sSL}, 7
        s_lshl_b32 s{sTMP}, s{sTMP}, 7
        v_add_u32 v{vBA}, s{sTMP}, v{vBA}""")
        a(f"""v_lshrrev_b32 v{vT}, 1, v{vR}
        v_lshlrev_b32 v{vA}, 13, v{vT}
        v_and_b32 v{vT}, 1, v{vR}
        v_lshl_add_u32 v{vA}, v{vT}, 9, v{vA}
        v_lshrrev_b32 v{vT}, 1, v{vG}
        v_lshl_add_u32 v{vA}, v{vT}, 8, v{vA}
        v_and_b32 v{vT}, 1, v{vG}
        v_lshl_add_u32 v{vA}, v{vT}, 6, v{vA}
        v_lshl_add_u32 v{vA}, v{vN3}, 4, v{vA}
        s_lshr_b32 s{sTMP}, s{sSL}, 3
        s_lshl_b32 s{sTMP}, s{sTMP}, 14
        s_bfe_u32 s{sTMP+1}, s{sSL}, 0x20001
        s_lshl_b32 s{sTMP+1}, s{sTMP+1}, 11
        s_add_u32 s{sTMP}, s{sTMP}, s{sTMP+1}
        s_and_b32 s{sTMP+1}, s{sSL}, 1
        s_lshl_b32 s{sTMP+1}, s{sTMP+1}, 7
        s_add_u32 s{sTMP}, s{sTMP}, s{sTMP+1}
        s_add_u32 s{sTMP}, s{sTMP}, {GU_OFF}""")
        self.lds_wait(C_XN, 4, vZ, vT, sleep=0)
        for s in range(2):
            a(f"ds_read_b128 {vr(BW+4*s,4)}, v{vBA} offset:{XN+s*64}")
        a("s_waitcnt lgkmcnt(0)")
        for s in range(2):
            for mat in range(2):
                for blk in range(4):
                    d = D0 + 4 * (mat * 4 + blk)
                    c = "0" if s == 0 else vr(d, 4)
                    a(f"v_mfma_f32_16x16x32_bf16 {vr(d,4)}, {vr(AW+4*(mat*8+s*4+blk),4)}, {vr(BW+4*s,4)}, {c}")
        for mat in range(2):
            self.sel4(16 + 4 * mat, D0 + 16 * mat, D0 + 16 * mat + 4, D0 + 16 * mat + 8, D0 + 16 * mat + 12)
        self.tag_f32(range(16, 24), vTG12, sM12)
        for mat in range(2):
            a(f"buffer_store_dwordx4 {vr(16+4*mat,4)}, v{vA}, {WSR}, s{sTMP} offen offset:{mat*1024} {self.st}")
        self.lds_signal(C_HST, vZ, vONE)
        self.stamp(3)
        a("s_branch L_wo")
        a.label("L_h0b")
        a("s_waitcnt vmcnt(4)")
        for s in range(4):
            for blk in range(4):
                r = AW + 4 * (s * 4 + blk)
                off = trA8(WQT, 4, blk, s)
                a(f"ds_read_b64_tr_b16 {vr(r,2)}, v{vTA8} offset:{off}")
                a(f"ds_read_b64_tr_b16 {vr(r+2,2)}, v{vTA8} offset:{off+512}")
        a(f"""s_and_b32 s{sTMP}, s{sJ}, 3
        s_lshl_b32 s{sTMP+1}, s{sTMP}, 8
        v_add_u32 v{vBA}, s{sTMP+1}, v{vBA}
        v_lshlrev_b32 v{vA}, 16, v{vN3}
        v_lshl_add_u32 v{vA}, v{vR}, 6, v{vA}
        v_lshl_add_u32 v{vA}, v{vG}, 4, v{vA}
        s_lshl_b32 s{sTMP}, s{sTMP}, 11
        s_lshl_b32 s{sTMP+1}, s{sKVH}, 13
        s_add_u32 s{sTMP}, s{sTMP}, s{sTMP+1}
        s_lshr_b32 s{sTMP+1}, s{sJ}, 2
        s_lshl_b32 s{sTMP+1}, s{sTMP+1}, 8
        s_add_u32 s{sTMP}, s{sTMP}, s{sTMP+1}
        s_add_u32 s{sTMP}, s{sTMP}, {Q_OFF}""")
        self.lds_wait(C_XN, 4, vZ, vT, sleep=0)
        for s in range(4):
            a(f"ds_read_b128 {vr(BW+4*s,4)}, v{vBA} offset:{XN+s*64}")
        for s in range(4):
            a(f"s_waitcnt lgkmcnt({3-s})")
            for blk in range(4):
                d = D0 + 4 * blk
                c = "0" if s == 0 else vr(d, 4)
                a(f"v_mfma_f32_16x16x32_bf16 {vr(d,4)}, {vr(AW+4*(s*4+blk),4)}, {vr(BW+4*s,4)}, {c}")
        self.sel4(16, D0, D0 + 4, D0 + 8, D0 + 12)
        a(f"s_and_b32 s{sT8}, s{sT}, 0xff\nv_mov_b32 v20, s{sT8}\ns_movk_i32 s{sT8}, 0xff")
        self.tag_f32(range(16, 20), 20, sT8, half=0x80)
        a(f"buffer_store_dwordx4 v[16:19], v{vA}, {WSR}, s{sTMP} offen {self.st}")
        self.lds_signal(C_QST, vZ, vONE)
        self.stamp(3)
        a("s_branch L_wo")
        a.label("L_h2b")
        a(f"""v_lshlrev_b32 v{vA}, 4, v0
        s_lshr_b32 s{sTMP}, s{sJ}, 3
        s_lshl_b32 s{sTMP}, s{sTMP}, 16
        s_lshl_b32 s{sTMP+1}, s{sKVH}, 13
        s_add_u32 s{sTMP}, s{sTMP}, s{sTMP+1}
        s_add_u32 s{sTMP}, s{sTMP}, {Q_OFF}
        s_add_u32 s{sTMP+1}, s{sTMP}, 4096""")
        self.lds_wait(C_QST, 1, vZ, vT, sleep=1)
        if self.qsleep: a(f"s_sleep {self.qsleep}")
        ld = "\n".join(f"buffer_load_dwordx4 {vr(16+4*(2*ks+i),4)}, v{vA}, {WSR}, s{sTMP+(ks>>1)} offen offset:{(ks&1)*2048+i*1024} {self.ld}"
                       for ks in range(4) for i in range(2))
        a(f"s_and_b32 s{sT8}, s{sT}, 0xff")
        self.glb_poll(ld, range(16, 48), sT8, 0xff, vT, early=True)
        for r in range(8):
            a(f"v_add_f32 v{16+r}, v{16+r}, v{24+r}\nv_add_f32 v{32+r}, v{32+r}, v{40+r}")
        for r in range(8):
            a(f"v_add_f32 v{16+r}, v{16+r}, v{32+r}")
        for i in range(4):
            a(f"v_cvt_pk_bf16_f32 v{24+i}, v{16+2*i}, v{17+2*i}")
        a(f"""v_lshlrev_b32 v{vA}, 3, v0
        ds_write_b64 v{vA}, v[24:25] offset:{QL}
        ds_write_b64 v{vA}, v[26:27] offset:{QL+512}""")
        self.lds_signal(C_Q, vZ, vONE)
        self.stamp(3)
        a("s_branch L_wo")
        a.label("L_h3b")
        a(f"""s_cmp_ge_u32 s{sJ}, 28
        s_cbranch_scc1 L_wo
        s_waitcnt vmcnt(4)""")
        for blk in range(8):
            off = W2T + (blk >> 1) * 256 + (blk & 1) * 32
            a(f"ds_read_b64_tr_b16 {vr(AW+4*blk,2)}, v{vTA4} offset:{off}")
            a(f"ds_read_b64_tr_b16 {vr(AW+4*blk+2,2)}, v{vTA4} offset:{off+PS4}")
        a(f"""v_lshlrev_b32 v{vA}, 4, v0
        s_lshr_b32 s{sTMP}, s{sSL}, 2
        s_lshl_b32 s{sTMP}, s{sTMP}, 13
        s_add_u32 s{sTMP}, s{sTMP}, {GU_OFF}
        s_add_u32 s{sTMP+1}, s{sTMP}, 4096""")
        self.lds_wait(C_HST, 1, vZ, vT, sleep=1)
        if self.gusleep: a(f"s_sleep {self.gusleep}")
        GB = 48
        ld = "\n".join(f"buffer_load_dwordx4 {vr(GB+8*hi+4*mat,4)}, v{vA}, {WSR}, s{sTMP+(hi>>1)} offen offset:{(hi&1)*2048+mat*1024} {self.ld}"
                       for hi in range(4) for mat in range(2))
        self.glb_poll(ld, range(GB, GB + 32), sT12, 0xfff, vT, early=True)
        for r in range(8):
            a(f"v_add_f32 v{GB+r}, v{GB+r}, v{GB+8+r}\nv_add_f32 v{GB+16+r}, v{GB+16+r}, v{GB+24+r}")
        for r in range(8):
            a(f"v_add_f32 v{GB+r}, v{GB+r}, v{GB+16+r}")
        for r in range(8):
            a(f"v_add_f32_dpp v{GB+r}, v{GB+r}, v{GB+r} row_ror:8 {DPPF}")
        for r in range(0, 8, 2): self.bf16r(GB + r, GB + r + 1, vT)
        for r in range(4): self.silu(GB + r, GB + 8 + r)
        self.bf16r(GB, GB + 1, vT); self.bf16r(GB + 2, GB + 3, vT)
        for r in range(4): a(f"v_mul_f32 v{GB+r}, v{GB+r}, v{GB+4+r}")
        HP, HO, HB_ = GB + 8, GB + 10, GB + 12
        a(f"""v_cvt_pk_bf16_f32 v{HP}, v{GB}, v{GB+1}
        v_cvt_pk_bf16_f32 v{HP+1}, v{GB+2}, v{GB+3}
        s_mov_b32 vcc_lo, 0xf0f0f0f0
        s_mov_b32 vcc_hi, 0xf0f0f0f0
        v_mov_b32_dpp v{HO}, v{HP} row_ror:4 {DPPF}
        v_mov_b32_dpp v{HO+1}, v{HP+1} row_ror:4 {DPPF}
        v_cndmask_b32 v{HB_}, v{HP}, v{HO}, vcc
        v_cndmask_b32 v{HB_+1}, v{HP+1}, v{HO+1}, vcc
        v_cndmask_b32 v{HB_+2}, v{HO}, v{HP}, vcc
        v_cndmask_b32 v{HB_+3}, v{HO+1}, v{HP+1}, vcc""")
        ZD = 96
        for blk in range(8):
            a(f"v_mfma_f32_16x16x32_bf16 {vr(ZD+4*blk,4)}, {vr(AW+4*blk,4)}, {vr(HB_,4)}, 0")
        a(f"""v_lshlrev_b32 v{vA}, 6, v{vN3}
        v_lshl_add_u32 v{vA}, v{vG}, 4, v{vA}
        v_lshl_add_u32 v{vA}, v{vR}, 8, v{vA}
        s_lshl_b32 s{sTMP}, s{sSL}, 11
        s_add_u32 s{sTMP}, s{sTMP}, {Z_OFF}""")
        for i in range(2):
            self.sel4(16 + 4 * i, ZD + 16 * i, ZD + 16 * i + 4, ZD + 16 * i + 8, ZD + 16 * i + 12)
        self.tag_f32(range(16, 24), vTG12, sM12)
        for i in range(2):
            a(f"buffer_store_dwordx4 {vr(16+4*i,4)}, v{vA}, {WSR}, s{sTMP} offen offset:{i*1024} {self.st}")
        self.lds_signal(C_ZST, vZ, vONE)
        self.stamp(3)
        a.label("L_wo")
        WA = 100
        a(f"""s_waitcnt vmcnt(0)""")
        self.lds_signal(C_WO, vZ, vONE)
        a(f"""s_lshl_b32 s{sTMP}, s{sHB}, 8
        v_add_u32 v{vTA4}, s{sTMP}, v{vTA4}""")
        self.lds_wait(C_WO, 4, vZ, vT, sleep=1)
        for blk in range(2):
            for s in range(2):
                for hf in range(2):
                    a(f"ds_read_b64_tr_b16 {vr(WA+8*blk+4*s+2*hf,2)}, v{vTA4} offset:{WOT+(8*s+hf)*PS4+blk*32}")
        self.stamp(4)
        vFA, vGATE, vXF, vOUTA = 120, 121, 122, 123
        a(f"""v_lshrrev_b32 v{vT}, 3, v0
        v_lshlrev_b32 v{vFA}, 13, v{vT}
        v_and_b32 v{vT}, 7, v0
        v_lshl_add_u32 v{vFA}, v{vT}, 4, v{vFA}
        s_lshr_b32 s{sTMP}, s{sWG}, 1
        s_lshl_b32 s{sTMP}, s{sTMP}, 8
        s_and_b32 s{sTMP+1}, s{sWG}, 1
        s_lshl_b32 s{sTMP+1}, s{sTMP+1}, 7
        s_add_u32 s{sTMP}, s{sTMP}, s{sTMP+1}
        v_add_u32 v{vFA}, s{sTMP}, v{vFA}""")
        a(f"""v_bfe_u32 v{vT}, v0, 2, 1
        s_and_b32 s{sTMP}, s{sWG}, 1
        s_lshl_b32 s{sTMP}, s{sTMP}, 1
        v_add_u32 v{vT}, s{sTMP}, v{vT}
        v_lshlrev_b32 v{vOUTA}, 10, v{vT}
        v_and_b32 v{vT}, 3, v0
        v_lshl_add_u32 v{vOUTA}, v{vT}, 3, v{vOUTA}
        v_bfe_u32 v{vT}, v0, 5, 1
        v_lshl_add_u32 v{vOUTA}, v{vT}, 1, v{vOUTA}
        v_bfe_u32 v{vT}, v0, 4, 1
        v_lshl_add_u32 v{vOUTA}, v{vT}, 2, v{vOUTA}
        s_lshr_b32 s{sTMP}, s{sWG}, 1
        s_lshl_b32 s{sTMP}, s{sTMP}, 5
        v_add_u32 v{vOUTA}, s{sTMP}, v{vOUTA}
        """)
        a(f"""s_cmp_lg_u32 s{sHB}, 2
        s_cbranch_scc1 L_tail
        s_cmp_ge_u32 s{sWG}, 64
        s_cbranch_scc1 L_tail""")
        a(f"buffer_load_ushort v{vXF}, v{vOUTA}, {R(RC)}, 0 offen")
        self.lds_wait(C_ZST, 1, vZ, vT, sleep=2)
        sI = 56
        for i in range(7):
            a(f"s_mov_b32 s{sI+i}, {Z_OFF + i*65536}")
        ld = "\n".join(f"buffer_load_dwordx4 {vr(16+4*i,4)}, v{vFA}, {WSR}, s{sI+i} offen {self.ld}" for i in range(7))
        self.glb_poll(ld, range(16, 44), sT12, 0xfff, vT, sleep=2, early=True)
        for step in (4, 2, 1):
            for i in range(step):
                if i + step < 7:
                    for r in range(4): a(f"v_add_f32 v{16+4*i+r}, v{16+4*i+r}, v{16+4*(i+step)+r}")
        self.reduce_scatter_rows(16)
        a(f"v_add_f32_dpp v16, v16, v16 row_ror:8 {DPPF}")
        a(f"v_cvt_pk_bf16_f32 v16, v16, v16\nv_and_b32 v16, 0xffff0000, v16")
        self.silu(16, 17)
        a(f"v_cvt_pk_bf16_f32 v16, v16, v16\nv_and_b32 v{vGATE}, 0xffff0000, v16")
        a(f"v_lshlrev_b32 v{vXF}, 16, v{vXF}")
        self.stamp(5)
        a.label("L_tail")
        vOA, vMLA = 14, 15
        a(f"""v_lshlrev_b32 v{vOA}, 14, v{vG}
        v_bfe_u32 v{vT}, v0, 3, 1
        v_lshl_add_u32 v{vOA}, v{vT}, 10, v{vOA}
        v_and_b32 v{vT}, 7, v0
        v_lshl_add_u32 v{vOA}, v{vT}, 4, v{vOA}
        s_lshl_b32 s{sTMP}, s{sHB}, 17
        s_lshl_b32 s{sTMP+1}, s{sKVH}, 11
        s_add_u32 s{sTMP}, s{sTMP}, s{sTMP+1}
        s_lshr_b32 s{sTMP+1}, s{sJ}, 3
        s_lshl_b32 s{sTMP+1}, s{sTMP+1}, 8
        s_add_u32 s{sTMP}, s{sTMP}, s{sTMP+1}
        s_bfe_u32 s{sTMP+1}, s{sJ}, 0x10002
        s_lshl_b32 s{sTMP+1}, s{sTMP+1}, 7
        s_add_u32 s{sTMP}, s{sTMP}, s{sTMP+1}
        s_add_u32 s{sTMP}, s{sTMP}, {O_OFF}
        s_add_u32 s{sTMP+1}, s{sTMP}, 65536
        s_lshl_b32 s{sTMP+2}, s{sHB}, 3
        s_add_u32 s{sTMP+2}, s{sTMP+2}, s{sKVH}
        s_lshl_b32 s{sTMP+2}, s{sTMP+2}, 8
        s_lshr_b32 s{sTMP+3}, s{sJ}, 3
        s_lshl_b32 s{sTMP+3}, s{sTMP+3}, 6
        s_add_u32 s{sTMP+2}, s{sTMP+2}, s{sTMP+3}
        s_add_u32 s{sTMP+2}, s{sTMP+2}, {ML_OFF}
        v_lshlrev_b32 v{vMLA}, 4, v{vG}""")
        vAW, vBR, vYA = 12 + 0, 13, 3
        a(f"""v_and_b32 v{vT}, 7, v0
        v_lshlrev_b32 v2, 4, v{vT}
        v_bfe_u32 v{vT}, v0, 3, 1
        v_lshl_add_u32 v2, v{vT}, 3, v2
        v_bfe_u32 v{vT}, v0, 5, 1
        v_lshl_add_u32 v2, v{vT}, 1, v2
        v_bfe_u32 v{vT}, v0, 4, 1
        v_lshl_add_u32 v2, v{vT}, 2, v2
        s_mul_i32 s{sTMP+3}, s{sHB}, {ALS}
        v_add_u32 v2, s{sTMP+3}, v2
        s_movk_i32 s{sTMP+3}, {ALS}
        v_mul_lo_u32 v{vBR}, v{vN3}, s{sTMP+3}
        v_lshl_add_u32 v{vBR}, v{vG}, 4, v{vBR}
        v_lshlrev_b32 v{vYA}, 6, v{vN3}
        v_lshl_add_u32 v{vYA}, v{vG}, 4, v{vYA}
        v_bfe_u32 v{vT}, v0, 2, 1
        v_lshl_add_u32 v{vYA}, v{vT}, 8, v{vYA}""")
        self.lds_wait(C_RED, 8, vZ, vT, sleep=1)
        self.stamp(6)
        self.glb_poll(f"buffer_load_dwordx4 v[16:19], v{vOA}, {WSR}, s{sTMP} offen {self.ld}\n"
                      f"buffer_load_dwordx4 v[20:23], v{vOA}, {WSR}, s{sTMP+1} offen {self.ld}\n"
                      f"buffer_load_dwordx4 v[24:27], v{vMLA}, {WSR}, s{sTMP+2} offen {self.ld}",
                      range(16, 28), sT12, 0xfff, vT)
        self.stamp(7)
        a("v_max_f32 v28, v24, v26")
        self.rows_allreduce("v_max_f32", 28, vT)
        a(f"""v_sub_f32 v24, v24, v28
        v_sub_f32 v26, v26, v28
        v_mul_f32 v24, {LOG2E}, v24
        v_mul_f32 v26, {LOG2E}, v26
        v_exp_f32 v24, v24
        v_exp_f32 v26, v26
        s_nop 0
        v_mul_f32 v25, v25, v24
        v_fmac_f32 v25, v27, v26""")
        for r in range(4): a(f"v_mul_f32 v{16+r}, v{16+r}, v24")
        for r in range(4): a(f"v_fmac_f32 v{16+r}, v{20+r}, v26")
        self.rows_allreduce("v_add_f32", 25, vT)
        self.reduce_scatter_rows(16)
        a(f"""v_rcp_f32 v25, v25
        s_nop 0
        v_mul_f32 v16, v16, v25
        v_cvt_pk_bf16_f32 v16, v16, v16
        ds_write_b16 v2, v16 offset:{AL}
        s_waitcnt lgkmcnt(0)
        s_barrier
        ds_read_b128 v[16:19], v{vBR} offset:{AL}
        ds_read_b128 v[20:23], v{vBR} offset:{AL+64}""")
        a(f"""s_lshl_b32 s{sTMP}, s{sKVH}, 5
        s_add_u32 s{sTMP}, s{sTMP}, s{sJ}
        s_lshl_b32 s{sTMP}, s{sTMP}, 11
        s_lshl_b32 s{sTMP+1}, s{sHB}, 9
        s_add_u32 s{sTMP}, s{sTMP}, s{sTMP+1}
        s_add_u32 s{sTMP}, s{sTMP}, {Y_OFF}
        s_waitcnt lgkmcnt(0)""")
        for blk in range(2):
            a(f"v_mfma_f32_16x16x32_bf16 {vr(24+4*blk,4)}, {vr(WA+8*blk,4)}, v[16:19], 0")
        for blk in range(2):
            a(f"v_mfma_f32_16x16x32_bf16 {vr(24+4*blk,4)}, {vr(WA+8*blk+4,4)}, v[20:23], {vr(24+4*blk,4)}")
        for r in range(4): a(f"v_cndmask_b32 v{24+r}, v{24+r}, v{28+r}, s[{sMB1}:{sMB1+1}]")
        self.tag_f32(range(24, 28), vTG12, sM12)
        a("s_mov_b32 exec_lo, 0x00ff00ff\ns_mov_b32 exec_hi, 0x00ff00ff")
        a(f"buffer_store_dwordx4 v[24:27], v{vYA}, {WSR}, s{sTMP} offen {self.st}")
        a("s_mov_b64 exec, -1")
        self.stamp(8)
        a(f"""s_cmp_lg_u32 s{sHB}, 2
        s_cbranch_scc1 L_hdone
        s_cmp_ge_u32 s{sWG}, 64
        s_cbranch_scc1 L_hdone""")
        for i in range(8):
            a(f"s_mov_b32 s{sI+i}, {Y_OFF + i*65536}")
        ld = "\n".join(f"buffer_load_dwordx4 {vr(32+4*i,4)}, v{vFA}, {WSR}, s{sI+i} offen {self.ld}" for i in range(8))
        self.glb_poll(ld, range(32, 64), sT12, 0xfff, vT)
        self.stamp(9)
        for step in (4, 2, 1):
            for i in range(step):
                for r in range(4): a(f"v_add_f32 v{32+4*i+r}, v{32+4*i+r}, v{32+4*(i+step)+r}")
        self.reduce_scatter_rows(32)
        a(f"v_add_f32_dpp v32, v32, v32 row_ror:8 {DPPF}")
        a(f"""v_cvt_pk_bf16_f32 v32, v32, v32
        v_and_b32 v32, 0xffff0000, v32
        v_mul_f32 v32, v32, v{vGATE}
        v_cvt_pk_bf16_f32 v32, v32, v32
        v_and_b32 v32, 0xffff0000, v32
        v_add_f32 v32, v32, v{vXF}
        v_cvt_pk_bf16_f32 v32, v32, v32""")
        srd(a, RA, sOUT, 4096)
        a(f"""s_mov_b32 exec_lo, 0x00ff00ff
        s_mov_b32 exec_hi, 0x00ff00ff
        buffer_store_short v32, v{vOUTA}, {R(RA)}, 0 offen
        s_mov_b64 exec, -1
        s_cmp_lg_u32 s{sWG}, 0
        s_cbranch_scc1 L_hdone
        v_mov_b32 v33, s{sT}
        s_mov_b64 exec, 1
        buffer_store_dword v33, v{vZ}, {WSR}, 0 offen sc1
        s_mov_b64 exec, -1""")
        a.label("L_hdone")
        self.stamp(10)
        self.dump_stamps(11)
        a.label("L_end")
        a("s_endpgm")

    def build(self):
        self.prologue()
        self.swave()
        self.helper()
        lines = hazard.fix(self.a.lines)
        txt = HEAD + f"; @launch grid=(256,1,1) block=(768,1,1) lds={LDS_SIZE}\n"
        txt += f""".amdgcn_target "amdgcn-amd-amdhsa--gfx950"
.text
.globl {NAME}
.p2align 8
.type {NAME},@function
{NAME}:
"""
        txt += "\n".join(lines) + "\n"
        txt += f""".section .rodata,"a"
.p2align 6
.amdhsa_kernel {NAME}
  .amdhsa_next_free_vgpr 168
  .amdhsa_next_free_sgpr 102
  .amdhsa_accum_offset 168
  .amdhsa_group_segment_fixed_size 0
  .amdhsa_kernarg_size 96
  .amdhsa_user_sgpr_count 2
  .amdhsa_user_sgpr_kernarg_segment_ptr 1
  .amdhsa_system_sgpr_workgroup_id_x 1
.end_amdhsa_kernel
"""
        return txt

def gen(**kw):
    return G(**kw).build()

if __name__ == "__main__":
    import argparse
    p = argparse.ArgumentParser()
    p.add_argument("-o", default="recurrent_scan__gqa_block_cached__glu_gated_swiglu__decode.s")
    p.add_argument("--prof", action="store_true")
    p.add_argument("opts", nargs="*")
    args = p.parse_args()
    kw = {}
    for o in args.opts:
        k, v = o.split("=")
        try: v = int(v)
        except ValueError: pass
        kw[k] = v
    open(args.o, "w").write(gen(prof=args.prof, **kw))
    print("wrote", args.o)
```

```python
import sys
from asmlib import Asm
import hazard

NAME = "recurrent_scan__gqa_block_cached__glu_gated_swiglu__decode_kernel"

Q_OFF, GU_OFF, Z_OFF, O_OFF, ML_OFF, Y_OFF, DBG_OFF = 0x40000, 0x80000, 0x280000, 0x100000, 0x180000, 0x200000, 0x400000
WS_SIZE = 0x800000
CNT, MT, LT, AL, ALS, QL = 0, 64, 192, 320, 144, 1024
PS8, PS4 = 1056, 1040
WQT = 2048
W1T = WQT + 16 * PS8
W3T = W1T + 8 * PS8
W2T = W3T + 8 * PS8
WOT = W2T + 8 * PS4
XN, XNS = WOT + 16 * PS4, 1088
assert XN + 4 * XNS <= 65536
RED = 65536
LDS_SIZE = 81920
C_XN, C_Q, C_M, C_RED, C_QST, C_HST, C_ZST, C_WO = [CNT + 4 * i for i in range(8)]
LOG2E = "0x3fb8aa3b"
SCALE = "0x3db504f3"

sWG, sWV = 2, 3
sX, sK, sV, sWQ, sWO, sW1, sW3, sW2, sOUT, sDBG, sWS = 4, 6, 8, 10, 12, 16, 18, 20, 22, 24, 26
sKVH, sJ, sT, sT12 = 28, 29, 30, 31
WSR = "s[32:35]"
RA, RB, RC = 36, 40, 44
sT16 = 48
sT8 = 49
sTMP = 50
sSPIN = 64
sHB = 65
sKVO, sKVQ, sSL1 = 67, 68, 69
XO = 0
sSTAMP = 70
sMB1, sMB2, sMB3 = 94, 96, 98

PROF_ROWS = [("S start", slice(0,8), 0), ("S issued", slice(0,8), 1), ("S qok", slice(0,8), 3), ("S Pdone", slice(0,8), 6),
             ("S PVdone", slice(0,8), 7), ("S stored", slice(0,8), 8), ("H xland", slice(8,12), 1), ("H lndone", slice(8,12), 2),
             ("H0 qst", 8, 3), ("H1 gust", 9, 3), ("H2 qlds", 10, 3), ("H3 zst", 11, 3), ("H wo", slice(8,12), 4),
             ("H2 gate", 10, 5), ("H redseen", slice(8,12), 6), ("H ogot", slice(8,12), 7), ("H ystored", slice(8,12), 8),
             ("H2 ygot", 10, 9), ("H end", slice(8,12), 10)]
PROF_XCD = (slice(0,8), 7)
def hop_stats(A, np):
    R = A.shape[0]
    st = np.nanmax(A[:, :, 0:8, 8], axis=2)
    h1 = np.zeros((R, 256, 4)); own = np.zeros((R, 256, 4))
    for w in range(256):
        kvh = (w + XO) & 7
        for hb in range(4):
            prods = [kvh + 8 * (hb * 8 + s) for s in range(8)]
            last = st[:, prods].max(axis=1)
            ready = np.maximum(last, A[:, w, 8 + hb, 6])
            h1[:, w, hb] = A[:, w, 8 + hb, 7] - last
            own[:, w, hb] = A[:, w, 8 + hb, 7] - ready
    print("   hop1 (ogot - last producer stored): med %.2f p90 %.2f max(med over reps) %.2f" % (np.median(h1), np.percentile(h1, 90), np.median(h1.reshape(R, -1).max(axis=1))))
    print("   hop1 (ogot - max(last stored, redseen)): med %.2f p90 %.2f max %.2f" % (np.median(own), np.percentile(own, 90), np.median(own.reshape(R, -1).max(axis=1))))
    import sys
    if "--tab" in sys.argv:
        for r in (R - 1, R - 2):
            print("   rep", r, "global last store %.2f" % st[r].max())
            for kvh in range(8):
                row = []
                for b in range(4):
                    prods = [kvh + 8 * (b * 8 + s) for s in range(8)]
                    og = A[r, ((kvh - XO) & 7)::8, 8 + b, 7]
                    row.append("[b%d st %s | og %.1f %.1f %.1f]" % (b, ",".join("%.1f" % x for x in sorted(st[r, prods])[-3:]), og.min(), np.median(og), og.max()))
                print("    kvh", kvh, " ".join(row), "| red max %.1f" % np.nanmax(A[r, kvh::8, 8:12, 6]))
    crit = []
    for r in range(R):
        wl = int(np.argmax(st[r])); kvh = wl & 7; b = wl >> 6
        cons = [A[r, ((kvh - XO) & 7) + 8 * j, 8 + b, 7] - st[r, wl] for j in range(32)]
        crit.append((np.median(cons), np.max(cons)))
    crit = np.array(crit)
    print("   hop1 for the globally last producer: med %.2f max %.2f" % (np.median(crit[:, 0]), np.median(crit[:, 1])))
    d = A[:, :, 8:12, 8] - A[:, :, 8:12, 7]
    print("   ogot->ystored: med %.2f p90 %.2f" % (np.nanmedian(d), np.nanpercentile(d, 90)))
    dl = A[:, :, 8:12, 8].max(axis=2) - A[:, :, 8:12, 7].max(axis=2)
    print("   last ogot->ystored in wg: med %.2f p90 %.2f" % (np.nanmedian(dl), np.nanpercentile(dl, 90)))
    h2 = np.zeros((R, 64))
    for f in range(64):
        cg, blk = f >> 4, (f >> 1) & 7
        prods = [w for w in range(256) if ((w >> 3) & 3) == cg]
        last = A[:, prods, 8 + (blk >> 1), 8].max(axis=1)
        h2[:, f] = A[:, f, 10, 9] - last
    print("   hop2 (ygot - last producer ystored): med %.2f p90 %.2f max %.2f" % (np.median(h2), np.percentile(h2, 90), np.median(h2.max(axis=1))))
HEAD = """; Kernarg layout for this problem (96 bytes, ptrs only, base s[0:1]):
"""

def srd(a, base, ptr, size, off=None):
    if off is None:
        a(f"s_mov_b32 s{base}, s{ptr}\ns_mov_b32 s{base+1}, s{ptr+1}")
    else:
        a(f"s_add_u32 s{base}, s{ptr}, s{off}\ns_addc_u32 s{base+1}, s{ptr+1}, 0")
    a(f"s_mov_b32 s{base+2}, {size}\ns_mov_b32 s{base+3}, 0x00020000")

def R(b): return f"s[{b}:{b+3}]"
def vr(b, n): return f"v[{b}:{b+n-1}]"

DPPF = "row_mask:0xf bank_mask:0xf"

class G:
    def __init__(self, prof=False, kv_nt=True, w_nt=True, spin_lds=1 << 18, spin_glb=1 << 14,
                 nv1=16, kprio=1, qsleep=16, gusleep=16, ho_ld="sc1", ho_st="sc1", nopoll=0, exp=0, dbg=0, pad=0, lanepoll=1, tsleep=0, noml=0, odelay=0, xo=0, xq=0, xg=0):
        self.a = Asm()
        self.prof = prof or dbg
        self.dbg = dbg
        self.lanepoll = lanepoll
        self.tsleep = tsleep
        self.noml = noml
        self.xo, self.xq, self.xg = xo, xq, xg
        global XO
        XO = xo
        self.odelay = odelay
        self.pad = pad
        self.kv_nt = " nt" if kv_nt else ""
        self.w_nt = " nt" if w_nt else ""
        self.spin_lds = spin_lds
        self.spin_glb = spin_glb
        self.nstamp = 0
        self.nv1 = nv1
        self.exp = exp
        self.nopoll = nopoll
        self.kprio = kprio
        self.qsleep = qsleep
        self.gusleep = gusleep
        self.ld = ho_ld
        self.st = ho_st

    def stamp(self, i):
        if self.prof:
            self.a(f"s_memrealtime s[{sSTAMP+2*i}:{sSTAMP+2*i+1}]")

    def dump_dbg(self, slots, hslot=None, vt=4):
        a = self.a
        a("s_waitcnt lgkmcnt(0)")
        srd(a, RA, sDBG, 256)
        a(f"v_mov_b32 v{vt}, 0\nv_mov_b32 v{vt+1}, 0")
        a(f"s_not_b32 s{sTMP}, s{sSTAMP}")
        a(f"v_writelane_b32 v{vt}, s{sTMP}, 0")
        for i, (st, sl) in enumerate(slots):
            a(f"v_writelane_b32 v{vt}, s{sSTAMP+2*st}, {i+1}")
            if sl is None:
                a(f"s_lshl_b32 s{sTMP}, s{sHB}, 2\ns_add_u32 s{sTMP}, s{sTMP}, {4*hslot}")
            else:
                a(f"s_mov_b32 s{sTMP}, {4*sl}")
            a(f"v_writelane_b32 v{vt+1}, s{sTMP}, {i+1}")
        a(f"s_mov_b64 exec, {(1 << (len(slots)+1)) - 1}")
        a(f"buffer_atomic_umax v{vt}, v{vt+1}, {R(RA)}, 0 offen sc1")
        a("s_mov_b64 exec, -1")

    def dump_stamps(self, n, vt=4):
        if not self.prof: return
        a = self.a
        if self.dbg:
            if n == 9: self.dump_dbg([(0,1),(1,2),(3,3),(7,4),(8,5)])
            else: self.dump_dbg([(1,6),(2,7),(3,None),(7,12),(8,13),(9,14),(10,15)], hslot=8)
            return
        a("s_waitcnt lgkmcnt(0)")
        a(f"v_mov_b32 v{vt}, 0")
        for i in range(n):
            a(f"v_writelane_b32 v{vt}, s{sSTAMP+2*i}, {i}")
        a(f"""s_mul_i32 s{sTMP}, s{sWG}, 12
        s_add_u32 s{sTMP}, s{sTMP}, s{sWV}
        s_lshl_b32 s{sTMP}, s{sTMP}, 6
        s_add_u32 s{sTMP}, s{sTMP}, {DBG_OFF}
        v_mbcnt_lo_u32_b32 v{vt+1}, -1, 0
        v_mbcnt_hi_u32_b32 v{vt+1}, -1, v{vt+1}
        v_lshlrev_b32 v{vt+1}, 2, v{vt+1}
        v_add_u32 v{vt+1}, s{sTMP}, v{vt+1}
        s_mov_b64 exec, 0xffff
        buffer_store_dword v{vt}, v{vt+1}, {WSR}, 0 offen
        s_mov_b64 exec, -1""")

    def rows_allreduce(self, op, x, t):
        a = self.a
        a(f"""v_mov_b32 v{t}, v{x}
        v_permlane32_swap_b32 v{x}, v{t}
        {op} v{x}, v{x}, v{t}
        v_mov_b32 v{t}, v{x}
        v_permlane16_swap_b32 v{x}, v{t}
        {op} v{x}, v{x}, v{t}""")

    def quad_allreduce(self, op, x):
        a = self.a
        a(f"{op}_dpp v{x}, v{x}, v{x} quad_perm:[1,0,3,2] {DPPF}")
        a(f"{op}_dpp v{x}, v{x}, v{x} quad_perm:[2,3,0,1] {DPPF}")

    def wave_allreduce_add(self, x, t):
        a = self.a
        self.quad_allreduce("v_add_f32", x)
        a(f"v_add_f32_dpp v{x}, v{x}, v{x} row_half_mirror {DPPF}")
        a(f"v_add_f32_dpp v{x}, v{x}, v{x} row_mirror {DPPF}")
        self.rows_allreduce("v_add_f32", x, t)

    def lds_signal(self, cnt, vzero, vone):
        self.a(f"""s_mov_b64 exec, 1
        ds_add_u32 v{vzero}, v{vone} offset:{cnt}
        s_mov_b64 exec, -1""")

    def lds_wait(self, cnt, val, vzero, vt, sleep=1, extra=None, stage=0):
        a = self.a
        L = a.newlabel("L_spin"); D = a.newlabel("L_spun")
        a(f"s_mov_b32 s{sSPIN}, {self.spin_lds}")
        a.label(L)
        a(f"ds_read_b32 v{vt}, v{vzero} offset:{cnt}")
        if extra: a(extra)
        a(f"""s_waitcnt lgkmcnt(0)
        v_cmp_le_u32 vcc, {val}, v{vt}
        s_cbranch_vccnz {D}""")
        if sleep: a(f"s_sleep {sleep}")
        a(f"""s_sub_u32 s{sSPIN}, s{sSPIN}, 1
        s_cmp_lg_u32 s{sSPIN}, 0
        s_cbranch_scc1 {L}""")
        a.label(D)

    def glb_poll(self, loads, regs, tagv, maskbits, vt, sleep=0, early=False):
        a = self.a
        if early and self.nopoll == 1: return
        if early and self.nopoll == 2:
            a(loads); a("s_waitcnt vmcnt(0)"); return
        L = a.newlabel("L_poll"); D = a.newlabel("L_polled")
        a(f"s_mov_b32 s{sSPIN}, {self.spin_glb}")
        a.label(L)
        a(loads)
        a("s_waitcnt vmcnt(0)")
        for r in regs:
            a(f"v_xor_b32 v{r}, s{tagv}, v{r}")
        rs = list(regs)
        a(f"v_or3_b32 v{vt}, v{rs[0]}, v{rs[1]}, v{rs[2]}")
        i = 3
        while i + 1 < len(rs):
            a(f"v_or3_b32 v{vt}, v{vt}, v{rs[i]}, v{rs[i+1]}"); i += 2
        if i < len(rs):
            a(f"v_or_b32 v{vt}, v{vt}, v{rs[i]}")
        a(f"""v_and_b32 v{vt}, {hex(maskbits)}, v{vt}
        v_cmp_ne_u32 vcc, 0, v{vt}""")
        if self.lanepoll:
            a(f"s_and_b64 exec, vcc, vcc\ns_cbranch_scc0 {D}")
        else:
            a(f"s_cbranch_vccz {D}")
        if sleep: a(f"s_sleep {sleep}")
        a(f"""s_sub_u32 s{sSPIN}, s{sSPIN}, 1
        s_cmp_lg_u32 s{sSPIN}, 0
        s_cbranch_scc1 {L}""")
        a.label(D)
        if self.lanepoll: a("s_mov_b64 exec, -1")

    def tag_f32(self, regs, vtag, smask, half=0x800):
        a = self.a
        for r in regs:
            a(f"v_add_u32 v{r}, {hex(half)}, v{r}")
        for r in regs:
            a(f"v_bfi_b32 v{r}, s{smask}, v{vtag}, v{r}")

    def reduce_scatter_rows(self, r0):
        a = self.a
        a(f"""v_permlane32_swap_b32 v{r0}, v{r0+1}
        v_permlane32_swap_b32 v{r0+2}, v{r0+3}
        v_add_f32 v{r0}, v{r0}, v{r0+1}
        v_add_f32 v{r0+2}, v{r0+2}, v{r0+3}
        v_permlane16_swap_b32 v{r0}, v{r0+2}
        v_add_f32 v{r0}, v{r0}, v{r0+2}""")

    def silu(self, x, t):
        a = self.a
        a(f"""v_mul_f32 v{t}, 0xbfb8aa3b, v{x}
        v_exp_f32 v{t}, v{t}
        v_add_f32 v{t}, 1.0, v{t}
        v_rcp_f32 v{t}, v{t}
        v_mul_f32 v{x}, v{x}, v{t}""")

    def bf16r(self, x, y, t):
        a = self.a
        a(f"""v_cvt_pk_bf16_f32 v{t}, v{x}, v{y}
        v_lshlrev_b32 v{x}, 16, v{t}
        v_and_b32 v{y}, 0xffff0000, v{t}""")

    def prologue(self):
        a = self.a
        a(f"""s_cmp_ge_u32 s{sWG}, 256
        s_cbranch_scc1 L_end
        s_load_dwordx16 s[4:19], s[0:1], 0
        s_load_dwordx8 s[20:27], s[0:1], 64
        v_lshrrev_b32 v1, 6, v0
        v_and_b32 v0, 63, v0
        v_readfirstlane_b32 s{sWV}, v1
        s_and_b32 s{sKVH}, s{sWG}, 7
        s_lshr_b32 s{sJ}, s{sWG}, 3""")
        if self.dbg:
            for i in range(1, 11): a(f"s_mov_b32 s{sSTAMP+2*i}, 0")
        if self.pad: a("s_memrealtime s[92:93]")
        self.stamp(0)
        a(f"""s_cmp_lg_u32 s{sWV}, 0
        s_cbranch_scc1 L_noclr
        v_lshlrev_b32 v1, 2, v0
        v_mov_b32 v2, 0
        s_mov_b64 exec, 0xffff
        ds_write_b32 v1, v2 offset:{CNT}
        s_mov_b64 exec, -1""")
        a.label("L_noclr")
        a(f"""s_cmp_ge_u32 s{sWV}, 8
        s_cbranch_scc1 L_helper""")

    def tags(self):
        a = self.a
        a(f"""s_add_u32 s{sT}, s{sT}, 1
        s_and_b32 s{sT12}, s{sT}, 0xfff
        s_and_b32 s{sT16}, s{sT}, 0xffff""")

    def swave(self):
        a = self.a
        vKO, vVO, vM0, vM1, vZ, vONE, vT, vT2 = 1, 2, 3, 4, 5, 6, 7, 144
        KB, VB, QB, XB, ACC = 8, 72, 136, 140, 152
        vM, vL, vAD = 145, 146, 147
        sO1, sO2, sO3 = 52, 53, 54
        sM1, sM2, sM3 = 56, 58, 60
        a(f"""v_and_b32 v{vT}, 15, v0
        v_lshrrev_b32 v{vT}, 2, v{vT}
        v_lshlrev_b32 v{vKO}, 8, v{vT}
        v_lshrrev_b32 v{vT}, 4, v0
        v_lshl_add_u32 v{vKO}, v{vT}, 6, v{vKO}
        v_and_b32 v{vT}, 3, v0
        v_lshl_add_u32 v{vKO}, v{vT}, 4, v{vKO}
        v_lshlrev_b32 v{vVO}, 4, v0
        v_mov_b32 v{vZ}, 0
        v_mov_b32 v{vONE}, 1
        s_lshr_b32 s{sTMP}, s{sJ}, 3
        s_lshl_b32 s{sTMP}, s{sTMP}, 3
        s_add_u32 s{sTMP}, s{sTMP}, s{sKVH}
        s_lshl_b32 s{sTMP}, s{sTMP}, 20
        s_and_b32 s{sTMP+1}, s{sJ}, 7
        s_lshl_b32 s{sTMP+1}, s{sTMP+1}, 17
        s_add_u32 s{sTMP}, s{sTMP}, s{sTMP+1}
        s_lshl_b32 s{sTMP+1}, s{sWV}, 14
        s_add_u32 s{sTMP}, s{sTMP}, s{sTMP+1}
        s_mov_b32 s{sO1}, 4096
        s_mov_b32 s{sO2}, 8192
        s_mov_b32 s{sO3}, 12288""")
        a("s_waitcnt lgkmcnt(0)\ns_barrier")
        srd(a, RA, sK, 16384, sTMP)
        srd(a, RB, sV, 16384, sTMP)
        if self.kprio: a(f"s_setprio {self.kprio}")
        so = ["0", f"s{sO1}", f"s{sO2}", f"s{sO3}"]
        for i in range(16):
            a(f"buffer_load_dwordx4 {vr(KB+4*i,4)}, v{vKO}, {R(RA)}, {so[i//4]} offen offset:{(i%4)*1024}{self.kv_nt}")
            if i == 0:
                srd(a, 32, sWS, WS_SIZE)
                a(f"s_load_dword s{sT}, s[{sWS}:{sWS+1}], 0")
        if self.kprio: a("s_setprio 0")
        for i in range(self.nv1):
            a(f"buffer_load_dwordx4 {vr(VB+4*i,4)}, v{vVO}, {R(RB)}, {so[i//4]} offen offset:{(i%4)*1024}{self.kv_nt}")
        self.stamp(1)
        if self.exp:
            a("s_waitcnt vmcnt(0)")
            for i in range(2, 9): self.stamp(i)
            a("s_branch L_sdone")
        a(f"""v_and_b32 v{vT}, 3, v0
        v_mov_b32 v{vT2}, 0xffff
        s_mov_b32 s{sM1}, 0x22222222
        s_mov_b32 s{sM1+1}, 0x22222222
        s_mov_b32 s{sM2}, 0x44444444
        s_mov_b32 s{sM2+1}, 0x44444444
        s_mov_b32 s{sM3}, 0x88888888
        s_mov_b32 s{sM3+1}, 0x88888888
        v_cmp_eq_u32 vcc, 0, v{vT}
        v_mov_b32 v{vM1}, 0xffff0000
        v_cndmask_b32 v{vM0}, 0, v{vT2}, vcc
        v_cndmask_b32 v{vM0}, v{vM0}, v{vM1}, s[{sM1}:{sM1+1}]
        v_cndmask_b32 v{vT}, 0, v{vT2}, s[{sM2}:{sM2+1}]
        v_cndmask_b32 v{vM1}, v{vT}, v{vM1}, s[{sM3}:{sM3+1}]""")
        a(f"""v_lshrrev_b32 v{vT}, 2, v0
        v_and_b32 v{vT}, 3, v{vT}
        v_lshlrev_b32 v{vAD}, 8, v{vT}
        v_lshlrev_b32 v{vT2}, 5, v{vT}
        v_lshrrev_b32 v{vT}, 4, v0
        v_lshl_add_u32 v{vAD}, v{vT}, 6, v{vAD}
        v_and_b32 v{vT}, 3, v0
        v_lshl_add_u32 v{vAD}, v{vT}, 4, v{vAD}""")
        a("s_waitcnt lgkmcnt(0)")
        self.tags()
        a(f"s_waitcnt vmcnt({self.nv1})")
        self.stamp(2)
        self.lds_wait(C_Q, 1, vZ, vT, sleep=1, extra=f"ds_read_b128 {vr(QB,4)}, v{vAD} offset:{QL}")
        self.stamp(3)
        for i in range(16):
            k = KB + 4 * i
            a(f"v_mfma_f32_16x16x32_bf16 {vr(k,4)}, {vr(k,4)}, {vr(QB,4)}, 0")
        for u in range(4):
            for t in range(4):
                k = KB + 4 * (4 * u + t)
                a(f"v_add_f32_dpp v{k+t}, v{k+(t^1)}, v{k+t} quad_perm:[1,0,3,2] {DPPF}")
                a(f"v_add_f32_dpp v{k+(t^2)}, v{k+(t^3)}, v{k+(t^2)} quad_perm:[1,0,3,2] {DPPF}")
            for t in range(4):
                k = KB + 4 * (4 * u + t)
                a(f"v_add_f32_dpp v{k+t}, v{k+(t^2)}, v{k+t} quad_perm:[2,3,0,1] {DPPF}")
            k0 = KB + 16 * u
            a(f"v_cndmask_b32 v{XB+u}, v{k0}, v{k0+4+1}, s[{sM1}:{sM1+1}]")
            a(f"v_cndmask_b32 v{XB+u}, v{XB+u}, v{k0+8+2}, s[{sM2}:{sM2+1}]")
            a(f"v_cndmask_b32 v{XB+u}, v{XB+u}, v{k0+12+3}, s[{sM3}:{sM3+1}]")
        self.bf16r(XB, XB + 1, vT); self.bf16r(XB + 2, XB + 3, vM)
        for u in range(4):
            a(f"v_mul_f32 v{XB+u}, {SCALE}, v{XB+u}")
        self.bf16r(XB, XB + 1, vT); self.bf16r(XB + 2, XB + 3, vM)
        a(f"""v_max3_f32 v{vM}, v{XB}, v{XB+1}, v{XB+2}
        v_max_f32 v{vM}, v{vM}, v{XB+3}""")
        self.quad_allreduce("v_max_f32", vM)
        self.rows_allreduce("v_max_f32", vM, vT)
        a(f"""s_lshl_b32 s{sTMP}, s{sWV}, 2
        v_add_u32 v{vAD}, s{sTMP}, v{vT2}
        ds_write_b32 v{vAD}, v{vM} offset:{MT}""")
        self.lds_signal(C_M, vZ, vONE)
        self.stamp(4)
        for i in range(self.nv1, 16):
            a(f"buffer_load_dwordx4 {vr(VB+4*i,4)}, v{vVO}, {R(RB)}, {so[i//4]} offen offset:{(i%4)*1024}{self.kv_nt}")
        self.stamp(5)
        tb = KB + 40
        self.lds_wait(C_M, 8, vZ, vT, sleep=1,
                      extra=f"ds_read_b128 {vr(tb,4)}, v{vT2} offset:{MT}\nds_read_b128 {vr(tb+4,4)}, v{vT2} offset:{MT+16}")
        a(f"""v_max3_f32 v{vM}, v{tb}, v{tb+1}, v{tb+2}
        v_max3_f32 v{vM}, v{vM}, v{tb+3}, v{tb+4}
        v_max3_f32 v{vM}, v{vM}, v{tb+5}, v{tb+6}
        v_max_f32 v{vM}, v{vM}, v{tb+7}""")
        for u in range(4): a(f"v_sub_f32 v{XB+u}, v{XB+u}, v{vM}")
        for u in range(4): a(f"v_mul_f32 v{XB+u}, {LOG2E}, v{XB+u}")
        for u in range(4): a(f"v_exp_f32 v{XB+u}, v{XB+u}")
        a(f"""v_add_f32 v{vL}, v{XB}, v{XB+1}
        v_add_f32 v{vT}, v{XB+2}, v{XB+3}
        v_add_f32 v{vL}, v{vL}, v{vT}""")
        for u in range(4): a(f"v_cvt_pk_bf16_f32 v{XB+u}, v{XB+u}, v{XB+u}")
        self.quad_allreduce("v_add_f32", vL)
        for i in range(16):
            u, t = i // 4, i % 4
            a(f"v_and_b32_dpp v{KB+2*i}, v{XB+u}, v{vM0} quad_perm:[{t},{t},{t},{t}] {DPPF}")
            a(f"v_and_b32_dpp v{KB+2*i+1}, v{XB+u}, v{vM1} quad_perm:[{t},{t},{t},{t}] {DPPF}")
        self.rows_allreduce("v_add_f32", vL, vT)
        a(f"ds_write_b32 v{vAD}, v{vL} offset:{LT}")
        self.stamp(6)
        for i in range(16):
            a(f"s_waitcnt vmcnt({15-i})")
            s = (i & 1) * 8
            for h in range(2):
                d = ACC + s + 4 * h
                c = "0" if i < 2 else vr(d, 4)
                a(f"v_mfma_f32_16x16x16_bf16 {vr(d,4)}, {vr(KB+2*i,2)}, {vr(VB+4*i+2*h,2)}, {c}")
        self.stamp(7)
        a(f"""v_lshlrev_b32 v{vAD}, 4, v0
        s_lshl_b32 s{sTMP}, s{sWV}, 11
        s_add_u32 s{sTMP}, s{sTMP}, {RED}
        v_add_u32 v{vT}, s{sTMP}, v{vAD}""")
        for r in range(8):
            a(f"v_add_f32 v{ACC+r}, v{ACC+r}, v{ACC+8+r}")
        a(f"""ds_write_b128 v{vT}, {vr(ACC,4)}
        ds_write_b128 v{vT}, {vr(ACC+4,4)} offset:1024
        s_mov_b64 exec, 1
        ds_add_rtn_u32 v{vT}, v{vZ}, v{vONE} offset:{C_RED}
        s_mov_b64 exec, -1
        s_waitcnt lgkmcnt(0)
        v_readfirstlane_b32 s{sTMP}, v{vT}
        s_cmp_lg_u32 s{sTMP}, 7
        s_cbranch_scc1 L_sdone""")
        a(f"v_add_u32 v{vAD}, {RED}, v{vAD}")
        for w in range(8):
            for j in range(2):
                a(f"ds_read_b128 {vr(KB+8*w+4*j,4)}, v{vAD} offset:{w*2048+j*1024}")
        a(f"ds_read_b128 {vr(VB,4)}, v{vT2} offset:{LT}\nds_read_b128 {vr(VB+4,4)}, v{vT2} offset:{LT+16}")
        vOA, vMLA, vTG = 136, 137, 138
        a(f"""s_lshl_b32 s{sTMP}, s{sWG}, 11
        s_add_u32 s{sTMP}, s{sTMP}, {O_OFF}
        v_lshlrev_b32 v{vOA}, 4, v0
        v_add_u32 v{vOA}, s{sTMP}, v{vOA}
        s_lshr_b32 s{sTMP}, s{sJ}, 3
        s_lshl_b32 s{sTMP}, s{sTMP}, 3
        s_add_u32 s{sTMP}, s{sTMP}, s{sKVH}
        s_lshl_b32 s{sTMP}, s{sTMP}, 8
        s_and_b32 s{sTMP+1}, s{sJ}, 3
        s_lshl_b32 s{sTMP+1}, s{sTMP+1}, 4
        s_add_u32 s{sTMP}, s{sTMP}, s{sTMP+1}
        s_bfe_u32 s{sTMP+1}, s{sJ}, 0x10002
        s_lshl_b32 s{sTMP+1}, s{sTMP+1}, 3
        s_add_u32 s{sTMP}, s{sTMP}, s{sTMP+1}
        s_add_u32 s{sTMP}, s{sTMP}, {ML_OFF}
        v_lshl_add_u32 v{vMLA}, v{vT2}, 1, s{sTMP}
        v_mov_b32 v{vTG}, s{sT12}
        s_mov_b32 s{sTMP+2}, 0xfff
        s_waitcnt lgkmcnt(0)""")
        for step in (4, 2, 1):
            for w in range(0, step):
                for r in range(8):
                    a(f"v_add_f32 v{KB+8*w+r}, v{KB+8*w+r}, v{KB+8*(w+step)+r}")
        self.tag_f32(range(KB, KB + 8), vTG, sTMP + 2)
        a(f"buffer_store_dwordx4 {vr(KB,4)}, v{vOA}, {WSR}, 0 offen {self.st}")
        a(f"buffer_store_dwordx4 {vr(KB+4,4)}, v{vOA}, {WSR}, 0 offen offset:1024 {self.st}")
        a(f"""v_add_f32 v{VB}, v{VB}, v{VB+1}
        v_add_f32 v{VB+2}, v{VB+2}, v{VB+3}
        v_add_f32 v{VB+4}, v{VB+4}, v{VB+5}
        v_add_f32 v{VB+6}, v{VB+6}, v{VB+7}
        v_add_f32 v{VB}, v{VB}, v{VB+2}
        v_add_f32 v{VB+4}, v{VB+4}, v{VB+6}
        v_add_f32 v{VB+1}, v{VB}, v{VB+4}
        v_or_b32 v{VB}, v{vM}, v{vTG}""")
        self.tag_f32([VB + 1], vTG, sTMP + 2)
        a(f"""s_mov_b64 exec, 0x1111
        buffer_store_dwordx2 {vr(VB,2)}, v{vMLA}, {WSR}, 0 offen {self.st}
        s_mov_b64 exec, -1""")
        self.stamp(8)
        a.label("L_sdone")
        self.dump_stamps(9)
        a("s_endpgm")

    def dma(self, n, srdb, voff, soff_reg, soff_step, lds_base, lds_step=1024, flags=""):
        a = self.a
        if self.exp == 2: return
        for i in range(n):
            a(f"s_mov_b32 m0, {lds_base + i*lds_step}" if isinstance(lds_base, int) else
              f"s_add_u32 m0, s{lds_base[0]}, {lds_base[1] + i*lds_step}")
            if i > 0:
                a(f"s_add_u32 s{soff_reg}, s{soff_reg}, {soff_step}")
            a(f"buffer_load_dwordx4 v{voff}, {R(srdb)}, s{soff_reg} offen{flags} lds")

    def sel4(self, dst, d0, d1, d2, d3):
        a = self.a
        for r in range(4): a(f"v_cndmask_b32 v{dst+r}, v{d0+r}, v{d1+r}, s[{sMB1}:{sMB1+1}]")
        for r in range(4): a(f"v_cndmask_b32 v{dst+r}, v{dst+r}, v{d2+r}, s[{sMB2}:{sMB2+1}]")
        for r in range(4): a(f"v_cndmask_b32 v{dst+r}, v{dst+r}, v{d3+r}, s[{sMB3}:{sMB3+1}]")

    def helper(self):
        a = self.a
        vZ, vONE, vT, vA, vD8, vD4 = 5, 6, 7, 1, 2, 3
        a.label("L_helper")
        sSL = sTMP + 4
        a(f"""s_setprio 3
        s_sub_u32 s{sHB}, s{sWV}, 8
        v_mov_b32 v{vZ}, 0
        v_mov_b32 v{vONE}, 1
        v_lshlrev_b32 v{vA}, 4, v0
        s_lshl_b32 s{sTMP}, s{sHB}, 10
        v_add_u32 v{vA}, s{sTMP}, v{vA}
        s_mul_i32 s{sSL}, s{sKVH}, 28
        s_add_u32 s{sSL}, s{sSL}, s{sJ}
        s_add_u32 s{sKVO}, s{sKVH}, {self.xo}
        s_and_b32 s{sKVO}, s{sKVO}, 7
        s_add_u32 s{sKVQ}, s{sKVH}, {self.xq}
        s_and_b32 s{sKVQ}, s{sKVQ}, 7
        s_add_u32 s{sSL1}, s{sKVH}, {self.xg}
        s_and_b32 s{sSL1}, s{sSL1}, 7
        s_mul_i32 s{sSL1}, s{sSL1}, 28
        s_add_u32 s{sSL1}, s{sSL1}, s{sJ}
        v_bfe_u32 v13, v0, 2, 2
        v_and_b32 v14, 3, v0
        v_lshlrev_b32 v14, 4, v14
        v_lshrrev_b32 v{vT}, 5, v0
        v_lshl_add_u32 v{vD8}, v{vT}, 2, v13
        v_bfe_u32 v{vT}, v0, 4, 1
        v_lshl_add_u32 v12, v{vT}, 6, v14
        v_lshrrev_b32 v{vT}, 4, v0
        v_lshl_add_u32 v{vD4}, v{vT}, 6, v14
        v_lshl_add_u32 v{vD4}, v13, 10, v{vD4}
        s_waitcnt lgkmcnt(0)""")
        srd(a, RC, sX, 4096)
        a(f"buffer_load_dwordx4 v[8:11], v{vA}, {R(RC)}, 0 offen")
        srd(a, 32, sWS, WS_SIZE)
        a(f"s_load_dword s{sT}, s[{sWS}:{sWS+1}], 0")
        def wo_dma():
            srd(a, RB, sWO, 4096 * 1024)
            a(f"""s_lshl_b32 s{sTMP}, s{sKVO}, 19
            s_lshr_b32 s{sTMP+1}, s{sJ}, 2
            s_lshl_b32 s{sTMP+1}, s{sTMP+1}, 16
            s_add_u32 s{sTMP}, s{sTMP}, s{sTMP+1}
            s_and_b32 s{sTMP+1}, s{sJ}, 3
            s_lshl_b32 s{sTMP+1}, s{sTMP+1}, 8
            s_add_u32 s{sTMP}, s{sTMP}, s{sTMP+1}
            s_lshl_b32 s{sTMP+1}, s{sHB}, 14
            s_add_u32 s{sTMP}, s{sTMP}, s{sTMP+1}
            s_mul_i32 s{sTMP+2}, s{sHB}, {4*PS4}""")
            self.dma(4, RB, vD4, sTMP, 4096, (sTMP + 2, WOT), lds_step=PS4, flags=self.w_nt)
        a(f"""s_cmp_eq_u32 s{sHB}, 0
        s_cbranch_scc1 L_h0a
        s_cmp_eq_u32 s{sHB}, 2
        s_cbranch_scc1 L_h2a
        s_cmp_ge_u32 s{sJ}, 28
        s_cbranch_scc1 L_h2a
        s_cmp_eq_u32 s{sHB}, 1
        s_cbranch_scc1 L_h1a""")
        srd(a, RA, sW2, 1792 * 1024)
        a(f"""s_lshr_b32 s{sTMP}, s{sSL}, 2
        s_lshl_b32 s{sTMP}, s{sTMP}, 15
        s_and_b32 s{sTMP+1}, s{sSL}, 3
        s_lshl_b32 s{sTMP+1}, s{sTMP+1}, 8
        s_add_u32 s{sTMP}, s{sTMP}, s{sTMP+1}""")
        self.dma(8, RA, vD4, sTMP, 4096, W2T, lds_step=PS4, flags=self.w_nt)
        wo_dma()
        a("s_barrier\ns_waitcnt vmcnt(12)\ns_branch L_ln")
        a.label("L_h1a")
        srd(a, RA, sW1, 512 * 3584)
        srd(a, RB, sW3, 512 * 3584)
        a(f"""s_movk_i32 s{sTMP+1}, 3584
        v_mul_lo_u32 v{vA}, v{vD8}, s{sTMP+1}
        v_add_u32 v{vA}, v12, v{vA}
        s_and_b32 s{sTMP}, s{sSL1}, 7
        s_mul_i32 s{sTMP}, s{sTMP}, {64*3584}
        s_lshr_b32 s{sTMP+1}, s{sSL1}, 3
        s_lshl_b32 s{sTMP+1}, s{sTMP+1}, 7
        s_add_u32 s{sTMP}, s{sTMP}, s{sTMP+1}
        s_mov_b32 s{sTMP+3}, s{sTMP}""")
        self.dma(8, RA, vA, sTMP, 8 * 3584, W1T, lds_step=PS8, flags=self.w_nt)
        self.dma(8, RB, vA, sTMP + 3, 8 * 3584, W3T, lds_step=PS8, flags=self.w_nt)
        wo_dma()
        a("s_barrier\ns_waitcnt vmcnt(20)\ns_branch L_ln")
        a.label("L_h0a")
        srd(a, RA, sWQ, 512 * 8192)
        a(f"""v_lshl_add_u32 v{vA}, v{vD8}, 13, v12
        s_and_b32 s{sTMP}, s{sJ}, 3
        s_lshl_b32 s{sTMP}, s{sTMP}, 20
        s_lshl_b32 s{sTMP+1}, s{sKVQ}, 10
        s_add_u32 s{sTMP}, s{sTMP}, s{sTMP+1}
        s_lshr_b32 s{sTMP+1}, s{sJ}, 2
        s_lshl_b32 s{sTMP+1}, s{sTMP+1}, 7
        s_add_u32 s{sTMP}, s{sTMP}, s{sTMP+1}""")
        self.dma(16, RA, vA, sTMP, 8 * 8192, WQT, lds_step=PS8, flags=self.w_nt)
        wo_dma()
        a("s_barrier\ns_waitcnt vmcnt(20)\ns_branch L_ln")
        a.label("L_h2a")
        wo_dma()
        a("s_barrier\ns_waitcnt vmcnt(4)")
        a.label("L_ln")
        self.stamp(1)
        if self.exp:
            a("s_waitcnt vmcnt(0)")
            for i in range(2, 11): self.stamp(i)
            a("s_branch L_hdone")
        X = 12
        for i in range(4):
            a(f"v_lshlrev_b32 v{X+2*i}, 16, v{8+i}\nv_and_b32 v{X+2*i+1}, 0xffff0000, v{8+i}")
        S, S2 = 20, 21
        a(f"""v_add_f32 v{S}, v{X}, v{X+1}
        v_add_f32 v{S2}, v{X+2}, v{X+3}
        v_add_f32 v22, v{X+4}, v{X+5}
        v_add_f32 v23, v{X+6}, v{X+7}
        v_add_f32 v{S}, v{S}, v{S2}
        v_add_f32 v22, v22, v23
        v_add_f32 v{S}, v{S}, v22""")
        self.wave_allreduce_add(S, vT)
        a(f"v_mul_f32 v{S}, 0x3b000000, v{S}")
        for i in range(8): a(f"v_sub_f32 v{24+i}, v{X+i}, v{S}")
        a(f"v_mul_f32 v{S2}, v24, v24\nv_mul_f32 v22, v25, v25")
        for i in range(2, 8, 2):
            a(f"v_fmac_f32 v{S2}, v{24+i}, v{24+i}\nv_fmac_f32 v22, v{25+i}, v{25+i}")
        a(f"v_add_f32 v{S2}, v{S2}, v22")
        self.wave_allreduce_add(S2, vT)
        a(f"v_mul_f32 v{S2}, 0x3b000000, v{S2}")
        self.bf16r(S, S2, vT)
        a(f"v_add_f32 v{S2}, 0x3727c5ac, v{S2}")
        a(f"v_cvt_pk_bf16_f32 v{S2}, v{S2}, v{S2}\nv_and_b32 v{S2}, 0xffff0000, v{S2}")
        a(f"v_sqrt_f32 v{S2}, v{S2}")
        a(f"v_cvt_pk_bf16_f32 v{S2}, v{S2}, v{S2}\nv_and_b32 v{S2}, 0xffff0000, v{S2}")
        a(f"v_rcp_f32 v22, v{S2}")
        for i in range(8): a(f"v_sub_f32 v{X+i}, v{X+i}, v{S}")
        for i in range(0, 8, 2): self.bf16r(X + i, X + i + 1, vT)
        for i in range(8): a(f"v_mul_f32 v{24+i}, v{X+i}, v22")
        for i in range(8): a(f"v_fma_f32 v{X+i}, -v{24+i}, v{S2}, v{X+i}")
        for i in range(8): a(f"v_fmac_f32 v{24+i}, v{X+i}, v22")
        for i in range(4): a(f"v_cvt_pk_bf16_f32 v{8+i}, v{24+2*i}, v{25+2*i}")
        a(f"""s_mul_i32 s{sTMP}, s{sHB}, {XNS}
        v_lshlrev_b32 v{vA}, 4, v0
        v_add_u32 v{vA}, s{sTMP}, v{vA}
        ds_write_b128 v{vA}, v[8:11] offset:{XN}""")
        self.lds_signal(C_XN, vZ, vONE)
        a("s_waitcnt lgkmcnt(0)")
        self.tags()
        self.stamp(2)
        vN3, vG, vR = 8, 9, 10
        vTG12, sM12 = 4, 66
        vTA8, vTA4, vBA = 12, 13, 14
        a(f"""v_and_b32 v{vN3}, 3, v0
        v_lshrrev_b32 v{vG}, 4, v0
        v_bfe_u32 v{vR}, v0, 2, 2
        v_mov_b32 v{vTG12}, s{sT12}
        s_mov_b32 s{sM12}, 0xfff
        s_mov_b32 s{sMB1}, 0x00f000f0
        s_mov_b32 s{sMB1+1}, 0x00f000f0
        s_mov_b32 s{sMB2}, 0x0f000f00
        s_mov_b32 s{sMB2+1}, 0x0f000f00
        s_mov_b32 s{sMB3}, 0xf000f000
        s_mov_b32 s{sMB3+1}, 0xf000f000
        v_lshlrev_b32 v{vT}, 3, v{vN3}
        v_lshl_add_u32 v{vT}, v{vR}, 6, v{vT}
        s_movk_i32 s{sTMP}, {PS8}
        v_mad_u32_u24 v{vTA8}, v{vG}, s{sTMP}, v{vT}
        s_movk_i32 s{sTMP}, {2*PS4}
        v_mad_u32_u24 v{vTA4}, v{vG}, s{sTMP}, v{vT}
        s_movk_i32 s{sTMP}, {XNS}
        v_mul_u32_u24 v{vBA}, s{sTMP}, v{vN3}
        v_lshl_add_u32 v{vBA}, v{vG}, 4, v{vBA}""")
        a(f"""s_cmp_eq_u32 s{sHB}, 2
        s_cbranch_scc1 L_h2b
        s_cmp_eq_u32 s{sHB}, 3
        s_cbranch_scc1 L_h3b
        s_cmp_eq_u32 s{sHB}, 0
        s_cbranch_scc1 L_h0b
        s_cmp_ge_u32 s{sJ}, 28
        s_cbranch_scc1 L_wo""")
        AW, BW, D0 = 16, 80, 96
        def trA8(base, nks, blk, s):
            return base + 4 * s * PS8 + (blk >> 1) * 256 + (blk & 1) * 32
        a("s_waitcnt vmcnt(4)")
        for mat in range(2):
            for s in range(2):
                for blk in range(4):
                    r = AW + 4 * (mat * 8 + s * 4 + blk)
                    off = trA8(W3T if mat else W1T, 2, blk, s)
                    a(f"ds_read_b64_tr_b16 {vr(r,2)}, v{vTA8} offset:{off}")
                    a(f"ds_read_b64_tr_b16 {vr(r+2,2)}, v{vTA8} offset:{off+512}")
        a(f"""s_and_b32 s{sTMP}, s{sSL1}, 7
        s_lshl_b32 s{sTMP}, s{sTMP}, 7
        v_add_u32 v{vBA}, s{sTMP}, v{vBA}""")
        a(f"""v_lshrrev_b32 v{vT}, 1, v{vR}
        v_lshlrev_b32 v{vA}, 13, v{vT}
        v_and_b32 v{vT}, 1, v{vR}
        v_lshl_add_u32 v{vA}, v{vT}, 9, v{vA}
        v_lshrrev_b32 v{vT}, 1, v{vG}
        v_lshl_add_u32 v{vA}, v{vT}, 8, v{vA}
        v_and_b32 v{vT}, 1, v{vG}
        v_lshl_add_u32 v{vA}, v{vT}, 6, v{vA}
        v_lshl_add_u32 v{vA}, v{vN3}, 4, v{vA}
        s_lshr_b32 s{sTMP}, s{sSL1}, 3
        s_lshl_b32 s{sTMP}, s{sTMP}, 14
        s_bfe_u32 s{sTMP+1}, s{sSL1}, 0x20001
        s_lshl_b32 s{sTMP+1}, s{sTMP+1}, 11
        s_add_u32 s{sTMP}, s{sTMP}, s{sTMP+1}
        s_and_b32 s{sTMP+1}, s{sSL1}, 1
        s_lshl_b32 s{sTMP+1}, s{sTMP+1}, 7
        s_add_u32 s{sTMP}, s{sTMP}, s{sTMP+1}
        s_add_u32 s{sTMP}, s{sTMP}, {GU_OFF}""")
        self.lds_wait(C_XN, 4, vZ, vT, sleep=0)
        for s in range(2):
            a(f"ds_read_b128 {vr(BW+4*s,4)}, v{vBA} offset:{XN+s*64}")
        a("s_waitcnt lgkmcnt(0)")
        for s in range(2):
            for mat in range(2):
                for blk in range(4):
                    d = D0 + 4 * (mat * 4 + blk)
                    c = "0" if s == 0 else vr(d, 4)
                    a(f"v_mfma_f32_16x16x32_bf16 {vr(d,4)}, {vr(AW+4*(mat*8+s*4+blk),4)}, {vr(BW+4*s,4)}, {c}")
        for mat in range(2):
            self.sel4(16 + 4 * mat, D0 + 16 * mat, D0 + 16 * mat + 4, D0 + 16 * mat + 8, D0 + 16 * mat + 12)
        self.tag_f32(range(16, 24), vTG12, sM12)
        for mat in range(2):
            a(f"buffer_store_dwordx4 {vr(16+4*mat,4)}, v{vA}, {WSR}, s{sTMP} offen offset:{mat*1024} {self.st}")
        self.lds_signal(C_HST, vZ, vONE)
        self.stamp(3)
        a("s_branch L_wo")
        a.label("L_h0b")
        a("s_waitcnt vmcnt(4)")
        for s in range(4):
            for blk in range(4):
                r = AW + 4 * (s * 4 + blk)
                off = trA8(WQT, 4, blk, s)
                a(f"ds_read_b64_tr_b16 {vr(r,2)}, v{vTA8} offset:{off}")
                a(f"ds_read_b64_tr_b16 {vr(r+2,2)}, v{vTA8} offset:{off+512}")
        a(f"""s_and_b32 s{sTMP}, s{sJ}, 3
        s_lshl_b32 s{sTMP+1}, s{sTMP}, 8
        v_add_u32 v{vBA}, s{sTMP+1}, v{vBA}
        v_lshlrev_b32 v{vA}, 16, v{vN3}
        v_lshl_add_u32 v{vA}, v{vR}, 6, v{vA}
        v_lshl_add_u32 v{vA}, v{vG}, 4, v{vA}
        s_lshl_b32 s{sTMP}, s{sTMP}, 11
        s_lshl_b32 s{sTMP+1}, s{sKVQ}, 13
        s_add_u32 s{sTMP}, s{sTMP}, s{sTMP+1}
        s_lshr_b32 s{sTMP+1}, s{sJ}, 2
        s_lshl_b32 s{sTMP+1}, s{sTMP+1}, 8
        s_add_u32 s{sTMP}, s{sTMP}, s{sTMP+1}
        s_add_u32 s{sTMP}, s{sTMP}, {Q_OFF}""")
        self.lds_wait(C_XN, 4, vZ, vT, sleep=0)
        for s in range(4):
            a(f"ds_read_b128 {vr(BW+4*s,4)}, v{vBA} offset:{XN+s*64}")
        for s in range(4):
            a(f"s_waitcnt lgkmcnt({3-s})")
            for blk in range(4):
                d = D0 + 4 * blk
                c = "0" if s == 0 else vr(d, 4)
                a(f"v_mfma_f32_16x16x32_bf16 {vr(d,4)}, {vr(AW+4*(s*4+blk),4)}, {vr(BW+4*s,4)}, {c}")
        self.sel4(16, D0, D0 + 4, D0 + 8, D0 + 12)
        a(f"s_and_b32 s{sT8}, s{sT}, 0xff\nv_mov_b32 v20, s{sT8}\ns_movk_i32 s{sT8}, 0xff")
        self.tag_f32(range(16, 20), 20, sT8, half=0x80)
        a(f"buffer_store_dwordx4 v[16:19], v{vA}, {WSR}, s{sTMP} offen {self.st}")
        self.lds_signal(C_QST, vZ, vONE)
        self.stamp(3)
        a("s_branch L_wo")
        a.label("L_h2b")
        a(f"""v_lshlrev_b32 v{vA}, 4, v0
        s_lshr_b32 s{sTMP}, s{sJ}, 3
        s_lshl_b32 s{sTMP}, s{sTMP}, 16
        s_lshl_b32 s{sTMP+1}, s{sKVH}, 13
        s_add_u32 s{sTMP}, s{sTMP}, s{sTMP+1}
        s_add_u32 s{sTMP}, s{sTMP}, {Q_OFF}
        s_add_u32 s{sTMP+1}, s{sTMP}, 4096""")
        self.lds_wait(C_QST, 1, vZ, vT, sleep=1)
        if self.qsleep: a(f"s_sleep {self.qsleep}")
        ld = "\n".join(f"buffer_load_dwordx4 {vr(16+4*(2*ks+i),4)}, v{vA}, {WSR}, s{sTMP+(ks>>1)} offen offset:{(ks&1)*2048+i*1024} {self.ld}"
                       for ks in range(4) for i in range(2))
        a(f"s_and_b32 s{sT8}, s{sT}, 0xff")
        self.glb_poll(ld, range(16, 48), sT8, 0xff, vT, early=True)
        for r in range(8):
            a(f"v_add_f32 v{16+r}, v{16+r}, v{24+r}\nv_add_f32 v{32+r}, v{32+r}, v{40+r}")
        for r in range(8):
            a(f"v_add_f32 v{16+r}, v{16+r}, v{32+r}")
        for i in range(4):
            a(f"v_cvt_pk_bf16_f32 v{24+i}, v{16+2*i}, v{17+2*i}")
        a(f"""v_lshlrev_b32 v{vA}, 3, v0
        ds_write_b64 v{vA}, v[24:25] offset:{QL}
        ds_write_b64 v{vA}, v[26:27] offset:{QL+512}""")
        self.lds_signal(C_Q, vZ, vONE)
        self.stamp(3)
        a("s_branch L_wo")
        a.label("L_h3b")
        a(f"""s_cmp_ge_u32 s{sJ}, 28
        s_cbranch_scc1 L_wo
        s_waitcnt vmcnt(4)""")
        for blk in range(8):
            off = W2T + (blk >> 1) * 256 + (blk & 1) * 32
            a(f"ds_read_b64_tr_b16 {vr(AW+4*blk,2)}, v{vTA4} offset:{off}")
            a(f"ds_read_b64_tr_b16 {vr(AW+4*blk+2,2)}, v{vTA4} offset:{off+PS4}")
        a(f"""v_lshlrev_b32 v{vA}, 4, v0
        s_lshr_b32 s{sTMP}, s{sSL}, 2
        s_lshl_b32 s{sTMP}, s{sTMP}, 13
        s_add_u32 s{sTMP}, s{sTMP}, {GU_OFF}
        s_add_u32 s{sTMP+1}, s{sTMP}, 4096""")
        self.lds_wait(C_HST, 1, vZ, vT, sleep=1)
        if self.gusleep: a(f"s_sleep {self.gusleep}")
        GB = 48
        ld = "\n".join(f"buffer_load_dwordx4 {vr(GB+8*hi+4*mat,4)}, v{vA}, {WSR}, s{sTMP+(hi>>1)} offen offset:{(hi&1)*2048+mat*1024} {self.ld}"
                       for hi in range(4) for mat in range(2))
        self.glb_poll(ld, range(GB, GB + 32), sT12, 0xfff, vT, early=True)
        for r in range(8):
            a(f"v_add_f32 v{GB+r}, v{GB+r}, v{GB+8+r}\nv_add_f32 v{GB+16+r}, v{GB+16+r}, v{GB+24+r}")
        for r in range(8):
            a(f"v_add_f32 v{GB+r}, v{GB+r}, v{GB+16+r}")
        for r in range(8):
            a(f"v_add_f32_dpp v{GB+r}, v{GB+r}, v{GB+r} row_ror:8 {DPPF}")
        for r in range(0, 8, 2): self.bf16r(GB + r, GB + r + 1, vT)
        for r in range(4): self.silu(GB + r, GB + 8 + r)
        self.bf16r(GB, GB + 1, vT); self.bf16r(GB + 2, GB + 3, vT)
        for r in range(4): a(f"v_mul_f32 v{GB+r}, v{GB+r}, v{GB+4+r}")
        HP, HO, HB_ = GB + 8, GB + 10, GB + 12
        a(f"""v_cvt_pk_bf16_f32 v{HP}, v{GB}, v{GB+1}
        v_cvt_pk_bf16_f32 v{HP+1}, v{GB+2}, v{GB+3}
        s_mov_b32 vcc_lo, 0xf0f0f0f0
        s_mov_b32 vcc_hi, 0xf0f0f0f0
        v_mov_b32_dpp v{HO}, v{HP} row_ror:4 {DPPF}
        v_mov_b32_dpp v{HO+1}, v{HP+1} row_ror:4 {DPPF}
        v_cndmask_b32 v{HB_}, v{HP}, v{HO}, vcc
        v_cndmask_b32 v{HB_+1}, v{HP+1}, v{HO+1}, vcc
        v_cndmask_b32 v{HB_+2}, v{HO}, v{HP}, vcc
        v_cndmask_b32 v{HB_+3}, v{HO+1}, v{HP+1}, vcc""")
        ZD = 96
        for blk in range(8):
            a(f"v_mfma_f32_16x16x32_bf16 {vr(ZD+4*blk,4)}, {vr(AW+4*blk,4)}, {vr(HB_,4)}, 0")
        a(f"""v_lshlrev_b32 v{vA}, 6, v{vN3}
        v_lshl_add_u32 v{vA}, v{vG}, 4, v{vA}
        v_lshl_add_u32 v{vA}, v{vR}, 8, v{vA}
        s_lshl_b32 s{sTMP}, s{sSL}, 11
        s_add_u32 s{sTMP}, s{sTMP}, {Z_OFF}""")
        for i in range(2):
            self.sel4(16 + 4 * i, ZD + 16 * i, ZD + 16 * i + 4, ZD + 16 * i + 8, ZD + 16 * i + 12)
        self.tag_f32(range(16, 24), vTG12, sM12)
        for i in range(2):
            a(f"buffer_store_dwordx4 {vr(16+4*i,4)}, v{vA}, {WSR}, s{sTMP} offen offset:{i*1024} {self.st}")
        self.lds_signal(C_ZST, vZ, vONE)
        self.stamp(3)
        a.label("L_wo")
        WA = 100
        a(f"""s_waitcnt vmcnt(0)""")
        self.lds_signal(C_WO, vZ, vONE)
        a(f"""s_lshl_b32 s{sTMP}, s{sHB}, 8
        v_add_u32 v{vTA4}, s{sTMP}, v{vTA4}""")
        self.lds_wait(C_WO, 4, vZ, vT, sleep=1)
        for blk in range(2):
            for s in range(2):
                for hf in range(2):
                    a(f"ds_read_b64_tr_b16 {vr(WA+8*blk+4*s+2*hf,2)}, v{vTA4} offset:{WOT+(8*s+hf)*PS4+blk*32}")
        self.stamp(4)
        vFA, vGATE, vXF, vOUTA = 120, 121, 122, 123
        a(f"""v_lshrrev_b32 v{vT}, 3, v0
        v_lshlrev_b32 v{vFA}, 13, v{vT}
        v_and_b32 v{vT}, 7, v0
        v_lshl_add_u32 v{vFA}, v{vT}, 4, v{vFA}
        s_lshr_b32 s{sTMP}, s{sWG}, 1
        s_lshl_b32 s{sTMP}, s{sTMP}, 8
        s_and_b32 s{sTMP+1}, s{sWG}, 1
        s_lshl_b32 s{sTMP+1}, s{sTMP+1}, 7
        s_add_u32 s{sTMP}, s{sTMP}, s{sTMP+1}
        v_add_u32 v{vFA}, s{sTMP}, v{vFA}""")
        a(f"""v_bfe_u32 v{vT}, v0, 2, 1
        s_and_b32 s{sTMP}, s{sWG}, 1
        s_lshl_b32 s{sTMP}, s{sTMP}, 1
        v_add_u32 v{vT}, s{sTMP}, v{vT}
        v_lshlrev_b32 v{vOUTA}, 10, v{vT}
        v_and_b32 v{vT}, 3, v0
        v_lshl_add_u32 v{vOUTA}, v{vT}, 3, v{vOUTA}
        v_bfe_u32 v{vT}, v0, 5, 1
        v_lshl_add_u32 v{vOUTA}, v{vT}, 1, v{vOUTA}
        v_bfe_u32 v{vT}, v0, 4, 1
        v_lshl_add_u32 v{vOUTA}, v{vT}, 2, v{vOUTA}
        s_lshr_b32 s{sTMP}, s{sWG}, 1
        s_lshl_b32 s{sTMP}, s{sTMP}, 5
        v_add_u32 v{vOUTA}, s{sTMP}, v{vOUTA}
        """)
        a(f"""s_cmp_lg_u32 s{sHB}, 2
        s_cbranch_scc1 L_tail
        s_cmp_ge_u32 s{sWG}, 64
        s_cbranch_scc1 L_tail""")
        a(f"buffer_load_ushort v{vXF}, v{vOUTA}, {R(RC)}, 0 offen")
        self.lds_wait(C_ZST, 1, vZ, vT, sleep=2)
        sI = 56
        for i in range(7):
            a(f"s_mov_b32 s{sI+i}, {Z_OFF + i*65536}")
        ld = "\n".join(f"buffer_load_dwordx4 {vr(16+4*i,4)}, v{vFA}, {WSR}, s{sI+i} offen {self.ld}" for i in range(7))
        self.glb_poll(ld, range(16, 44), sT12, 0xfff, vT, sleep=2, early=True)
        for step in (4, 2, 1):
            for i in range(step):
                if i + step < 7:
                    for r in range(4): a(f"v_add_f32 v{16+4*i+r}, v{16+4*i+r}, v{16+4*(i+step)+r}")
        self.reduce_scatter_rows(16)
        a(f"v_add_f32_dpp v16, v16, v16 row_ror:8 {DPPF}")
        a(f"v_cvt_pk_bf16_f32 v16, v16, v16\nv_and_b32 v16, 0xffff0000, v16")
        self.silu(16, 17)
        a(f"v_cvt_pk_bf16_f32 v16, v16, v16\nv_and_b32 v{vGATE}, 0xffff0000, v16")
        a(f"v_lshlrev_b32 v{vXF}, 16, v{vXF}")
        self.stamp(5)
        a.label("L_tail")
        vOA, vMLA = 14, 15
        a(f"""v_lshlrev_b32 v{vOA}, 14, v{vG}
        v_bfe_u32 v{vT}, v0, 3, 1
        v_lshl_add_u32 v{vOA}, v{vT}, 10, v{vOA}
        v_and_b32 v{vT}, 7, v0
        v_lshl_add_u32 v{vOA}, v{vT}, 4, v{vOA}
        s_lshl_b32 s{sTMP}, s{sHB}, 17
        s_lshl_b32 s{sTMP+1}, s{sKVO}, 11
        s_add_u32 s{sTMP}, s{sTMP}, s{sTMP+1}
        s_lshr_b32 s{sTMP+1}, s{sJ}, 3
        s_lshl_b32 s{sTMP+1}, s{sTMP+1}, 8
        s_add_u32 s{sTMP}, s{sTMP}, s{sTMP+1}
        s_bfe_u32 s{sTMP+1}, s{sJ}, 0x10002
        s_lshl_b32 s{sTMP+1}, s{sTMP+1}, 7
        s_add_u32 s{sTMP}, s{sTMP}, s{sTMP+1}
        s_add_u32 s{sTMP}, s{sTMP}, {O_OFF}
        s_add_u32 s{sTMP+1}, s{sTMP}, 65536
        s_lshl_b32 s{sTMP+2}, s{sHB}, 3
        s_add_u32 s{sTMP+2}, s{sTMP+2}, s{sKVO}
        s_lshl_b32 s{sTMP+2}, s{sTMP+2}, 8
        s_lshr_b32 s{sTMP+3}, s{sJ}, 3
        s_lshl_b32 s{sTMP+3}, s{sTMP+3}, 6
        s_add_u32 s{sTMP+2}, s{sTMP+2}, s{sTMP+3}
        s_add_u32 s{sTMP+2}, s{sTMP+2}, {ML_OFF}
        v_lshlrev_b32 v{vMLA}, 4, v{vG}""")
        vAW, vBR, vYA = 12 + 0, 13, 3
        a(f"""v_and_b32 v{vT}, 7, v0
        v_lshlrev_b32 v2, 4, v{vT}
        v_bfe_u32 v{vT}, v0, 3, 1
        v_lshl_add_u32 v2, v{vT}, 3, v2
        v_bfe_u32 v{vT}, v0, 5, 1
        v_lshl_add_u32 v2, v{vT}, 1, v2
        v_bfe_u32 v{vT}, v0, 4, 1
        v_lshl_add_u32 v2, v{vT}, 2, v2
        s_mul_i32 s{sTMP+3}, s{sHB}, {ALS}
        v_add_u32 v2, s{sTMP+3}, v2
        s_movk_i32 s{sTMP+3}, {ALS}
        v_mul_lo_u32 v{vBR}, v{vN3}, s{sTMP+3}
        v_lshl_add_u32 v{vBR}, v{vG}, 4, v{vBR}
        v_lshlrev_b32 v{vYA}, 6, v{vN3}
        v_lshl_add_u32 v{vYA}, v{vG}, 4, v{vYA}
        v_bfe_u32 v{vT}, v0, 2, 1
        v_lshl_add_u32 v{vYA}, v{vT}, 8, v{vYA}""")
        self.lds_wait(C_RED, 8, vZ, vT, sleep=1)
        self.stamp(6)
        if self.odelay: a(f"s_sleep {self.odelay}")
        self.glb_poll(f"buffer_load_dwordx4 v[16:19], v{vOA}, {WSR}, s{sTMP} offen {self.ld}\n"
                      f"buffer_load_dwordx4 v[20:23], v{vOA}, {WSR}, s{sTMP+1} offen {self.ld}\n"
                      f"buffer_load_dwordx4 v[24:27], v{vMLA}, {WSR}, s{sTMP+2} offen {self.ld}",
                      range(16, 24 if self.noml else 28), sT12, 0xfff, vT, sleep=self.tsleep)
        self.stamp(7)
        a("v_max_f32 v28, v24, v26")
        self.rows_allreduce("v_max_f32", 28, vT)
        a(f"""v_sub_f32 v24, v24, v28
        v_sub_f32 v26, v26, v28
        v_mul_f32 v24, {LOG2E}, v24
        v_mul_f32 v26, {LOG2E}, v26
        v_exp_f32 v24, v24
        v_exp_f32 v26, v26
        s_nop 0
        v_mul_f32 v25, v25, v24
        v_fmac_f32 v25, v27, v26""")
        for r in range(4): a(f"v_mul_f32 v{16+r}, v{16+r}, v24")
        for r in range(4): a(f"v_fmac_f32 v{16+r}, v{20+r}, v26")
        self.rows_allreduce("v_add_f32", 25, vT)
        self.reduce_scatter_rows(16)
        a(f"""v_rcp_f32 v25, v25
        s_nop 0
        v_mul_f32 v16, v16, v25
        v_cvt_pk_bf16_f32 v16, v16, v16
        ds_write_b16 v2, v16 offset:{AL}
        s_waitcnt lgkmcnt(0)
        s_barrier
        ds_read_b128 v[16:19], v{vBR} offset:{AL}
        ds_read_b128 v[20:23], v{vBR} offset:{AL+64}""")
        a(f"""s_lshl_b32 s{sTMP}, s{sKVO}, 5
        s_add_u32 s{sTMP}, s{sTMP}, s{sJ}
        s_lshl_b32 s{sTMP}, s{sTMP}, 11
        s_lshl_b32 s{sTMP+1}, s{sHB}, 9
        s_add_u32 s{sTMP}, s{sTMP}, s{sTMP+1}
        s_add_u32 s{sTMP}, s{sTMP}, {Y_OFF}
        s_waitcnt lgkmcnt(0)""")
        for blk in range(2):
            a(f"v_mfma_f32_16x16x32_bf16 {vr(24+4*blk,4)}, {vr(WA+8*blk,4)}, v[16:19], 0")
        for blk in range(2):
            a(f"v_mfma_f32_16x16x32_bf16 {vr(24+4*blk,4)}, {vr(WA+8*blk+4,4)}, v[20:23], {vr(24+4*blk,4)}")
        for r in range(4): a(f"v_cndmask_b32 v{24+r}, v{24+r}, v{28+r}, s[{sMB1}:{sMB1+1}]")
        self.tag_f32(range(24, 28), vTG12, sM12)
        a("s_mov_b32 exec_lo, 0x00ff00ff\ns_mov_b32 exec_hi, 0x00ff00ff")
        a(f"buffer_store_dwordx4 v[24:27], v{vYA}, {WSR}, s{sTMP} offen {self.st}")
        a("s_mov_b64 exec, -1")
        self.stamp(8)
        a(f"""s_cmp_lg_u32 s{sHB}, 2
        s_cbranch_scc1 L_hdone
        s_cmp_ge_u32 s{sWG}, 64
        s_cbranch_scc1 L_hdone""")
        for i in range(8):
            a(f"s_mov_b32 s{sI+i}, {Y_OFF + i*65536}")
        ld = "\n".join(f"buffer_load_dwordx4 {vr(32+4*i,4)}, v{vFA}, {WSR}, s{sI+i} offen {self.ld}" for i in range(8))
        self.glb_poll(ld, range(32, 64), sT12, 0xfff, vT)
        self.stamp(9)
        for step in (4, 2, 1):
            for i in range(step):
                for r in range(4): a(f"v_add_f32 v{32+4*i+r}, v{32+4*i+r}, v{32+4*(i+step)+r}")
        self.reduce_scatter_rows(32)
        a(f"v_add_f32_dpp v32, v32, v32 row_ror:8 {DPPF}")
        a(f"""v_cvt_pk_bf16_f32 v32, v32, v32
        v_and_b32 v32, 0xffff0000, v32
        v_mul_f32 v32, v32, v{vGATE}
        v_cvt_pk_bf16_f32 v32, v32, v32
        v_and_b32 v32, 0xffff0000, v32
        v_add_f32 v32, v32, v{vXF}
        v_cvt_pk_bf16_f32 v32, v32, v32""")
        srd(a, RA, sOUT, 4096)
        a(f"""s_mov_b32 exec_lo, 0x00ff00ff
        s_mov_b32 exec_hi, 0x00ff00ff
        buffer_store_short v32, v{vOUTA}, {R(RA)}, 0 offen
        s_mov_b64 exec, -1
        s_cmp_lg_u32 s{sWG}, 0
        s_cbranch_scc1 L_hdone
        v_mov_b32 v33, s{sT}
        s_mov_b64 exec, 1
        buffer_store_dword v33, v{vZ}, {WSR}, 0 offen sc1
        s_mov_b64 exec, -1""")
        a.label("L_hdone")
        if self.pad:
            a(f"""s_cmp_lg_u32 s{sWG}, 0
            s_cbranch_scc1 L_nopad
            s_mov_b32 s{sSPIN}, 100000""")
            a.label("L_padloop")
            a(f"""s_memrealtime s[90:91]
            s_waitcnt lgkmcnt(0)
            s_sub_u32 s90, s90, s92
            s_cmp_ge_u32 s90, {self.pad}
            s_cbranch_scc1 L_nopad
            s_sub_u32 s{sSPIN}, s{sSPIN}, 1
            s_cmp_lg_u32 s{sSPIN}, 0
            s_cbranch_scc1 L_padloop""")
            a.label("L_nopad")
        self.stamp(10)
        self.dump_stamps(11)
        a.label("L_end")
        a("s_endpgm")

    def build(self):
        self.prologue()
        self.swave()
        self.helper()
        lines = hazard.fix(self.a.lines)
        txt = HEAD + f"; @launch grid=(256,1,1) block=(768,1,1) lds={LDS_SIZE}\n"
        txt += f""".amdgcn_target "amdgcn-amd-amdhsa--gfx950"
.text
.globl {NAME}
.p2align 8
.type {NAME},@function
{NAME}:
"""
        txt += "\n".join(lines) + "\n"
        txt += f""".section .rodata,"a"
.p2align 6
.amdhsa_kernel {NAME}
  .amdhsa_next_free_vgpr 168
  .amdhsa_next_free_sgpr 102
  .amdhsa_accum_offset 168
  .amdhsa_group_segment_fixed_size 0
  .amdhsa_kernarg_size 96
  .amdhsa_user_sgpr_count 2
  .amdhsa_user_sgpr_kernarg_segment_ptr 1
  .amdhsa_system_sgpr_workgroup_id_x 1
.end_amdhsa_kernel
"""
        return txt

def gen(**kw):
    return G(**kw).build()

if __name__ == "__main__":
    import argparse
    p = argparse.ArgumentParser()
    p.add_argument("-o", default="recurrent_scan__gqa_block_cached__glu_gated_swiglu__decode.s")
    p.add_argument("--prof", action="store_true")
    p.add_argument("opts", nargs="*")
    args = p.parse_args()
    kw = {}
    for o in args.opts:
        k, v = o.split("=")
        try: v = int(v)
        except ValueError: pass
        kw[k] = v
    open(args.o, "w").write(gen(prof=args.prof, **kw))
    print("wrote", args.o)
```
